```python
import torch

def _softmax(x, axis=-1):
    return torch.softmax(x, dim=axis)
def _gelu(x):
    return torch.nn.functional.gelu(x, approximate="tanh")
def _silu(x):
    return torch.nn.functional.silu(x)
def _sigmoid(x):
    return torch.sigmoid(x)
def _layernorm(x, axis=-1, eps=1e-5):
    m = x.mean(dim=axis, keepdim=True)
    v = x.var(dim=axis, keepdim=True, unbiased=False)
    return (x - m) / torch.sqrt(v + eps)
def _scatter_add(tgt, idx, src, axis=0):
    return tgt.clone().index_add_(axis, idx, src)
def _segment_sum(src, seg, n):
    out = torch.zeros((n,) + src.shape[1:], dtype=src.dtype)
    return out.index_add_(0, seg, src)
def _pad(x, pw):
    flat = tuple(v for pair in reversed(pw) for v in pair)
    return torch.nn.functional.pad(x, flat)

kernel_name = 'sequential_preLN__sliding_local_dilated__moe_arch_mod__prompt'

def setup_inputs():

    _w = (lambda a: (lambda t: t.to(torch.bfloat16) if t.is_floating_point() else t)(torch.as_tensor(a)))
    def _A_setup():
        B, S, D = 1, 2048, 640
        return {
            "x": _w((lambda *s: torch.randn(*s, dtype=torch.bfloat16) * 0.05)(B, S, D)),
            "wqkv": _w((lambda *s: torch.randn(*s, dtype=torch.bfloat16) * 0.05)(D, 3 * D)),
            "wo": _w((lambda *s: torch.randn(*s, dtype=torch.bfloat16) * 0.05)(D, D)),
        }
    _A_in = _A_setup()

    def _B_setup():
        B, S, D, F, C = 1, 2048, 640, 1536, 1
        return {
            "x": _w((lambda *s: torch.randn(*s, dtype=torch.bfloat16) * 0.05)(B, S, D)),
            "w_r": _w((lambda *s: torch.randn(*s, dtype=torch.bfloat16) * 0.05)(D)),
            "w_gate": _w((lambda *s: torch.randn(*s, dtype=torch.bfloat16) * 0.05)(D, F)),
            "w_up": _w((lambda *s: torch.randn(*s, dtype=torch.bfloat16) * 0.05)(D, F)),
            "w_down": _w((lambda *s: torch.randn(*s, dtype=torch.bfloat16) * 0.05)(F, D)),
        }
    _B_in = _B_setup()

    return {
        "A_x": _A_in["x"],
        "A_wqkv": _A_in["wqkv"],
        "A_wo": _A_in["wo"],
        "B_x": _B_in["x"],
        "B_w_r": _B_in["w_r"],
        "B_w_gate": _B_in["w_gate"],
        "B_w_up": _B_in["w_up"],
        "B_w_down": _B_in["w_down"],
    }

def reference(A_x, A_wqkv, A_wo, B_x, B_w_r, B_w_gate, B_w_up, B_w_down):
    def _A_ref(x, wqkv, wo):
        B, S, D = x.shape
        H = 32; Dh = D // H
        W, dil = 8, 2
        qkv = (lambda x, *d: x.permute(*d))((x @ wqkv).reshape(B, S, 3, H, Dh), 2, 0, 3, 1, 4)
        q, k, v = qkv[0], qkv[1], qkv[2]
        scale = Dh ** -0.5
        pos = torch.arange(S)
        off = torch.arange(W) * dil
        idx = pos[:, None] - off[None, :]
        mask = idx >= 0
        idx_c = torch.where(mask, idx, 0).reshape(-1)
        kg = k[:, :, idx_c, :].reshape(B, H, S, W, Dh)
        vg = v[:, :, idx_c, :].reshape(B, H, S, W, Dh)
        logits = torch.einsum("bhsd,bhswd->bhsw", q, kg) * scale
        logits = torch.where(mask[None, None, :, :], logits, -1e9)
        attn = _softmax(logits, axis=-1)
        o = torch.einsum("bhsw,bhswd->bhsd", attn, vg)
        return (lambda x, *d: x.permute(*d))(o, 0, 2, 1, 3).reshape(B, S, D) @ wo

    def _B_ref(x, w_r, w_gate, w_up, w_down):
        B, S, D = x.shape
        C = 1
        r = x @ w_r
        idx = torch.argsort(-r, axis=-1)[:, :C]
        idx_e = (lambda x, n, axis: torch.repeat_interleave(x, n, dim=axis))(idx.reshape(B, C, 1), D, axis=2)
        x_sel = (lambda x, i, axis: torch.take_along_dim(x, i, dim=axis))(x, idx_e, axis=1)
        g = _silu(x_sel @ w_gate)
        u = x_sel @ w_up
        y = (g * u) @ w_down
        r_sel = _sigmoid((lambda x, i, axis: torch.take_along_dim(x, i, dim=axis))(r, idx, axis=1))
        y = y * r_sel.reshape(B, C, 1)
        b_off = (torch.arange(B) * S).reshape(B, 1)
        flat_idx = (idx + b_off).reshape(B * C)
        zero = (x * 0.0).reshape(B * S, D)
        upd = _scatter_add(zero, flat_idx, y.reshape(B * C, D), axis=0)
        return x + upd.reshape(B, S, D)

    x = A_x
    h = x + _A_ref(_layernorm(x, axis=-1), A_wqkv, A_wo)
    h2 = h + _B_ref(_layernorm(h, axis=-1), B_w_r, B_w_gate, B_w_up, B_w_down)
    return h2
```

```python
class Asm:
    def __init__(self):
        self.lines = []
        self.launches = []
        self.kernels = []
        self._lbl = 0
    def __call__(self, s):
        for ln in s.strip("\n").split("\n"):
            self.lines.append("    " + ln.strip() if not ln.strip().endswith(":") else ln.strip())
    def label(self, base="L"):
        self._lbl += 1
        return f"{base}_{self._lbl}"
    def begin_kernel(self, name):
        self.lines.append(f".globl {name}")
        self.lines.append(".p2align 8")
        self.lines.append(f".type {name},@function")
        self.lines.append(f"{name}:")
    def end_kernel(self, name, vgpr, sgpr=102, accum=None):
        if accum is None:
            accum = min(256, (vgpr + 3) // 4 * 4)
        self.kernels.append((name, vgpr, sgpr, accum))
    def launch(self, name, grid, block, lds):
        self.launches.append(f"; @launch kernel={name} grid=({grid},1,1) block=({block},1,1) lds={lds}")
    def srd(self, d, base, nbytes):
        self(f"s_mov_b32 s{d}, s{base}")
        self(f"s_and_b32 s{d+1}, s{base+1}, 0xffff")
        self(f"s_mov_b32 s{d+2}, {nbytes}")
        self(f"s_mov_b32 s{d+3}, 0x00020000")
    def srd_const(self, d, nbytes):
        self(f"s_mov_b32 s{d+2}, {nbytes}")
        self(f"s_mov_b32 s{d+3}, 0x00020000")
    def srd_base(self, d, base):
        self(f"s_mov_b32 s{d}, s{base}")
        self(f"s_and_b32 s{d+1}, s{base+1}, 0xffff")
    def text(self, header=""):
        out = []
        if header:
            out.append(header.rstrip("\n"))
        out += self.launches
        out.append('.amdgcn_target "amdgcn-amd-amdhsa--gfx950"')
        out.append(".text")
        from hazard import pad
        out += pad(self.lines)
        out.append('.section .rodata,"a"')
        for name, vgpr, sgpr, accum in self.kernels:
            out.append(f""".p2align 6
.amdhsa_kernel {name}
  .amdhsa_next_free_vgpr {vgpr}
  .amdhsa_next_free_sgpr {sgpr}
  .amdhsa_accum_offset {accum}
  .amdhsa_group_segment_fixed_size 0
  .amdhsa_kernarg_size 88
  .amdhsa_user_sgpr_count 2
  .amdhsa_user_sgpr_kernarg_segment_ptr 1
  .amdhsa_system_sgpr_workgroup_id_x 1
  .amdhsa_float_denorm_mode_32 3
  .amdhsa_float_denorm_mode_16_64 3
.end_amdhsa_kernel""")
        return "\n".join(out) + "\n"
```

```python
import re
REG = re.compile(r"\b([vsa])(\d+)\b|\b([vsa])\[(\d+):(\d+)\]|\b(vcc|exec|m0|vcc_lo|vcc_hi|exec_lo|exec_hi|scc)\b")
TRANS = ("v_exp_f32", "v_log_f32", "v_rcp_f32", "v_rsq_f32", "v_sqrt_f32", "v_sin_f32", "v_cos_f32", "v_rcp_iflag_f32")
def regs(op):
    out = set()
    for m in REG.finditer(op):
        if m.group(1): out.add((m.group(1), int(m.group(2))))
        elif m.group(3):
            for i in range(int(m.group(4)), int(m.group(5)) + 1): out.add((m.group(3), i))
        else:
            n = m.group(6)
            if n.startswith("vcc"): out.add(("vcc", 0))
            elif n.startswith("exec"): out.add(("exec", 0))
            else: out.add((n, 0))
    return out
def split_ops(rest):
    ops, depth, cur = [], 0, ""
    for ch in rest:
        if ch == "[": depth += 1
        if ch == "]": depth -= 1
        if ch == "," and depth == 0:
            ops.append(cur.strip()); cur = ""
        else: cur += ch
    if cur.strip(): ops.append(cur.strip())
    return ops
class Ins:
    def __init__(self, text):
        self.text = text
        t = text.split(";")[0].strip()
        parts = t.split(None, 1)
        self.op = parts[0]
        rest = parts[1] if len(parts) > 1 else ""
        ops = split_ops(rest)
        if ops:
            last = ops[-1].split()
            self.mods = " ".join(last[1:]); ops[-1] = last[0] if last else ""
        else: self.mods = ""
        self.ops = ops
        op = self.op
        self.dst, self.src = set(), set()
        self.kind = "other"
        self.srcC = set(); self.srcAB = set()
        if op.startswith("v_mfma"):
            self.kind = "mfma"
            self.dst = regs(ops[0]); self.srcAB = regs(ops[1]) | regs(ops[2]); self.srcC = regs(ops[3])
            self.src = self.srcAB | self.srcC
            self.passes = 8 if "32x32" in op else (4 if "16x16" in op else 2)
        elif op.startswith("v_smfmac"):
            self.kind = "mfma"
            self.dst = regs(ops[0]); self.srcAB = regs(ops[1]) | regs(ops[2]) | regs(ops[3]); self.srcC = set(self.dst)
            self.src = self.srcAB | self.srcC
            self.passes = 8
        elif op.startswith("v_"):
            self.kind = "valu"
            if "swap" in op:
                self.dst = regs(ops[0]) | regs(ops[1]); self.src = set(self.dst)
            else:
                nd = 1
                if re.match(r"v_(add|sub|subrev|addc|subb|subbrev)_co_u32|v_div_scale|v_mad_u64_u32|v_mad_i64_i32", op): nd = 2
                for o in ops[:nd]: self.dst |= regs(o)
                for o in ops[nd:]: self.src |= regs(o)
                if re.match(r"v_(fmac|dot2c|dot4c|pk_fmac|mac)_", op) or "_dpp" in op or "row_" in self.mods or "quad_perm" in self.mods or op.startswith("v_writelane"): self.src |= regs(ops[0])
                if op.startswith("v_cmpx"): self.dst.add(("exec", 0))
            self.dpp = ("_dpp" in op) or ("row_" in self.mods) or ("quad_perm" in self.mods)
            self.trans = any(op.startswith(x) for x in TRANS)
            self.dot = op.startswith("v_dot")
            if self.dot:
                if op.startswith("v_dot2c"):
                    self.srcC = regs(ops[0]); self.srcAB = regs(ops[1]) | regs(ops[2])
                else:
                    self.srcC = regs(ops[3]); self.srcAB = regs(ops[1]) | regs(ops[2])
        elif op.startswith("ds_"):
            self.kind = "ds"
            if op.startswith("ds_read") or "permute" in op or "swizzle" in op or "_rtn" in op:
                self.dst = regs(ops[0])
                for o in ops[1:]: self.src |= regs(o)
            else:
                for o in ops: self.src |= regs(o)
        elif op.startswith(("buffer_", "global_", "flat_")):
            self.kind = "vmem"
            full = rest
            self.lds = bool(re.search(r"\blds\b", full)) or "_lds_" in op
            self.wide_store = False
            if ("load" in op) and not self.lds:
                self.dst = regs(ops[0])
                for o in ops[1:]: self.src |= regs(o)
            else:
                for o in ops: self.src |= regs(o)
                if "store" in op and ("x3" in op or "x4" in op):
                    self.wide_store = True
                    self.data = regs(ops[0]) if op.startswith("buffer_") else regs(ops[1])
                if "atomic" in op and "sc0" in full: self.dst = regs(ops[0])
            if self.lds: self.src.add(("m0", 0))
        elif op.startswith("s_"):
            self.kind = "salu"
            if op.startswith(("s_cmp", "s_waitcnt", "s_barrier", "s_nop", "s_branch", "s_cbranch", "s_endpgm", "s_sleep", "s_setprio", "s_bitcmp")):
                for o in ops: self.src |= regs(o)
            else:
                if ops: self.dst = regs(ops[0])
                for o in ops[1:]: self.src |= regs(o)
    def states(self):
        if self.op == "s_nop": return int(self.ops[0], 0) + 1
        return 1
def is_sg(r): return r[0] in ("s", "vcc")
def is_vg(r): return r[0] in ("v", "a")
def need(p, c):
    n = 0
    if p.kind == "valu":
        sg = {r for r in p.dst if is_sg(r)}
        vg = {r for r in p.dst if is_vg(r)}
        if sg & c.src:
            if c.kind == "valu":
                n = max(n, 4 if c.op.startswith(("v_readlane", "v_writelane")) else 2)
            if c.kind == "vmem": n = max(n, 5)
        if ("exec", 0) in p.dst:
            if c.kind == "mfma": n = max(n, 4)
            if c.kind == "valu": n = max(n, 5 if c.dpp else (4 if c.op.startswith(("v_readlane", "v_readfirstlane", "v_writelane", "v_permlane")) else 0))
        if vg & c.src:
            if c.kind == "mfma": n = max(n, 2)
            if c.kind == "valu":
                if c.dpp or c.op.startswith("v_permlane"): n = max(n, 2)
                if c.op.startswith(("v_readlane", "v_readfirstlane")): n = max(n, 1)
                if p.trans and not c.trans: n = max(n, 1)
        if p.dot and (vg & (c.src | c.dst)):
            if c.kind == "valu" and c.op == p.op and not (vg & c.srcAB): pass
            else: n = max(n, 3)
    if p.kind == "mfma":
        idx = {2: 0, 4: 1, 8: 2, 16: 3}[p.passes]
        if c.kind == "mfma":
            if p.dst & c.srcAB: n = max(n, (5, 8, 12, 20)[idx])
            if p.dst & c.srcC:
                if c.srcC == p.dst and c.passes == p.passes: n = max(n, (2, 0, 0, 0)[idx])
                else: n = max(n, (4, 6, 10, 18)[idx])
            elif p.dst & c.dst: n = max(n, (5, 8, 12, 20)[idx])
        elif c.kind in ("valu", "ds", "vmem"):
            if p.dst & (c.src | c.dst): n = max(n, (5, 8, 12, 20)[idx])
            if c.kind == "valu" and (p.srcC & c.dst): n = max(n, (1, 3, 7, 15)[idx])
    if p.kind == "salu" and ("m0", 0) in p.dst and ("m0", 0) in c.src and c.kind in ("vmem", "ds"): n = max(n, 1)
    if p.kind == "vmem" and getattr(p, "wide_store", False) and (p.data & c.dst):
        n = max(n, 2 if c.kind in ("valu", "mfma") else 1)
    return n
def pad(lines, verbose=False):
    out, hist = [], []
    added = 0
    for ln in lines:
        s = ln.strip()
        if not s or s.endswith(":") or s.startswith((".", ";")):
            out.append(ln); continue
        c = Ins(s)
        req = 0; dist = 0
        for p in reversed(hist):
            n = need(p, c)
            if n > dist: req = max(req, n - dist)
            dist += p.states()
            if dist > 24: break
        while req > 0:
            k = min(req, 16)
            nop = Ins(f"s_nop {k-1}")
            out.append(f"    s_nop {k-1}"); hist.append(nop); req -= k; added += 1
        out.append(ln); hist.append(c)
        if c.op in ("s_branch", "s_endpgm", "s_setpc_b64"): hist = []
        hist = hist[-30:]
    return out
```

```python
import sys, struct, math, os
sys.path.insert(0, "dev2"); sys.path.insert(0, "dev2")
from asmlib import Asm
NAME = "sequential_preLN__sliding_local_dilated__moe_arch_mod__prompt"

def f32(x): return "0x%08x" % struct.unpack("<I", struct.pack("<f", x))[0]
LOG2E = math.log2(math.e)

WS_EPOCH = 0
WS_YP    = 0x4000
WS_RS    = 0x14000
WS_ROWB  = 0x20000
WS_EK    = 0x30000
WS_TK    = 0x38000
WS_ROWA  = 0x40000
RSTR     = 61440
WS_U     = 0x130000
WS_T     = 0x140000
T_O, T_ST, T_FL, T_E, T_SZ = 0, 20480, 23040, 23552, 24320
NREP = 4
EKD = 0x180000
NTRY = 16
CNT = 0
UPRE = 0
RSL = 0
FINF = ''
NOSPEC = 0
WS_PROF  = 0x600000
WS_BYTES = 0x700000
X_BYTES = 2048 * 640 * 2; WQKV_BYTES = 640 * 1920 * 2; WO_BYTES = 640 * 640 * 2; FF_BYTES = 640 * 1536 * 2
TAGINC = 0x9e3779b1

SLOT = 36864
WO_L = 12288
MISC = 159744
ONES = MISC
STAT = MISC + 64
MODEW = MISC + 1024
WRL = MISC + 2048
WOKA = MODEW + 16
EKW, ECN, TKW = MODEW + 20, MODEW + 24, MODEW + 28
UL = MISC + 1152
SCR = MISC + 1280
PB = 135168
ZERO = MISC + 32
QKV = 96768; QS = 400
QO, KO, VO = 0, 128, 256
LDS_BYTES = 163840

PROF = False
CP2 = ()
CPA = 0
WFIRST = False
PAD1 = 0
PAD2 = 0
PAD3 = 0
CPT2 = 1
LATEG = False
LATEH = 0
HELP = 0
HW = 1
ESL = 1
BPR = (1, 0, 2)
APR = (2, 3)
EB = 1
EST = 1
WLO = 0
NPF = 0
XL_ = 1
PFW = 4
VM = 0
HAT = -5
VD = 1
DUT = (0, 5, 3, 8, 9, 6, 1, 2, 4, 7)
SM = 1
SSL = 0
F3 = 1
WSL = 1
VLATE = 0
XE = 0
NOACK = 0
EL = 1
NOPUSH = 0
PREW = 0
RS0 = 0
RP = 3
XLATE = 0
FW2 = 1
FB0 = 1
HFN = 6
EKE = 1
PKF = 0
WREG = 1
WRG = 100
WRS = 0
XPM = 2
APL = 3
BSL = 0
UPF = 6
UP0 = 6
UPH = 9
PRE = 7
SHR = 32
PER = (2, 1, 1, 1)
BDBG = ()
HALFRD = 0
TDBG = ()
FLE = 1
UT = 0
NU = 1
REMAP = 1
DUTY = 0x6559
D0AT = 3
PADS = 5
KB = 0
RE = 10
PERH = (2, 2, 2, 2)
KBH = 4
HOPS = (4, 5)
PADGAP = 256
FNT = ''
FHELP = 0
FH0 = 32
PXL = 'b9late'
PO = 'b9late'
PDN = 'none'
WLW = 0
XSL = 0
PTE = None
DNE = None
WOF = True
GAT = 7
FFIRST = False
PPOLL = 0
PREL = True
FSUF = ''
DLY_F = 0
SLT = 0
WL0 = False
WLATE = True
APRIO = 2
XINIT = True
TRIM = True
FW = 64
SLE = 1
FPT = False
CPT = 0
TLBW = 16
OTLB = False
CLEAN = False
WBK = 1
YW = 1
YSL = 0
LD2 = 0
LPOS = (-1, -1, -1, -1, 1, 2, 2)
SPS = {}
HSP = 1
LPOFF = 1
WBP = 4
TKL = 1
SNK = 1
WRE = -1
WRN = 6
PACE = {}
VE = 0
GRP = ''
TR3 = 1
CST = (1, 5, 9)
WB2 = 0
WBM = 0xaa6a
PUBL = 0
WBD = 0
BLAST = 0
ODL = 0
FH = 9
FP = 2
STG = (1, 6)
WB5 = 1
WB3 = 0
WB4 = 0
WB = 0
OUTF = ' sc1'
SP0 = 0
SPF = 4
SPJ = '456'
OW = 0
SW0 = 0
WO0 = 7
LPA = 20
SPR = 24
NOHELP = 0x1084
SH = 1
FSL = 1
CREP = True
BUP = 0
OBAR = True
LPRIO = 0
PRIO = 2
XROT = (5, 2)
ORD = 'none'
PT = 'b9late'
WOA = 7
WOM = 3
TB = 12
FW_ = 3
FQ0 = 4
FV_ = 5
BARPOS = 6
PTO = True
OSC = ' sc1'
BUB = 2
WO2 = 8
FAST = True
DBG = {"nodnpf", "noffpf"}
NST = 13
LDP = None
def blocks(*sizes):
    def f(u):
        o, lo = [], 0
        for B in sizes:
            o += [lo + (u + i) % B for i in range(B)]
            lo += B
        return o
    return f
def stag(u):
    j = u % 5
    ev = [2 * ((j + i) % 5) for i in range(5)]
    o = ev[:1 + j] + [2 * j + 1] + ev[1 + j:]
    return o + [2 * i + 1 for i in range(5) if i != j]
def stamp(a, i):
    if PROF and (LDP is None or i < 3): a(f"s_memrealtime s[{72+2*i}:{73+2*i}]")
XST_ = None
def xstamp(a, name, i):
    if XST_ == name: stamp(a, i)
def cstamp(a, i):
    if PROF and LDP == "clk":
        a(f"s_memrealtime s[{72+2*i}:{73+2*i}]"); a(f"s_memtime s[{74+2*i}:{75+2*i}]")
def lstamp(a, when, i):
    if PROF and LDP == when: a(f"s_memrealtime s[{72+2*i}:{73+2*i}]")
def dump_stamps(a):
    if not PROF: return
    a("s_mov_b64 exec, 1")
    a("s_waitcnt lgkmcnt(0)")
    a("s_lshl_b32 s3, s2, 3"); a(f"s_add_u32 s3, s3, s{WV}"); a("s_lshl_b32 s3, s3, 7"); a(f"s_add_u32 s3, s3, {WS_PROF}")
    a("v_mov_b32 v0, 0")
    for i in range(NST):
        a(f"v_mov_b32 v2, s{72+2*i}"); a(f"v_mov_b32 v3, s{73+2*i}")
        a(f"buffer_store_dwordx2 v[2:3], v0, s[24:27], s3 offen offset:{8*i}")
        a("s_nop 1")

SPIN = 3
def spin(a, label, sleep=1):
    if sleep: a(f"s_sleep {sleep}")
    a(f"s_sub_u32 s{SPIN}, s{SPIN}, 1")
    a(f"s_cbranch_scc0 {label}")
    a(f"s_mov_b32 s{SPIN}, 0")

def repoll(a, name, loads, masks):
    for i, (x, m) in enumerate(zip(loads, masks)):
        a(f"s_mov_b64 exec, {m}")
        a(f"s_cbranch_execz {name}{i}")
        a(x)
        a(f"{name}{i}:")
    a("s_mov_b64 exec, -1")

def round_bf16(a, dst, src):
    a(f"v_cvt_pk_bf16_f32 v{dst}, v{src}, v{src}")
    a(f"v_and_b32 v{dst}, 0xffff0000, v{dst}")

def ln_stats(a, s1, s2):
    a(f"v_mul_f32 v{s1}, {f32(1.0/640)}, v{s1}")
    a(f"v_mul_f32 v{s2}, {f32(1.0/640)}, v{s2}")
    a(f"v_fma_f32 v{s2}, -v{s1}, v{s1}, v{s2}")
    a(f"v_max_f32 v{s2}, 0, v{s2}")
    round_bf16(a, s2, s2)
    a(f"v_add_f32 v{s2}, {f32(1e-5)}, v{s2}")
    round_bf16(a, s2, s2)
    a(f"v_sqrt_f32 v{s2}, v{s2}")
    round_bf16(a, s1, s1)
    round_bf16(a, s2, s2)
    a(f"v_rcp_f32 v{s2}, v{s2}")

HIM = 47
def unpack(a, dst, src, n):
    for i in range(n):
        a(f"v_lshlrev_b32 v{dst+2*i}, 16, v{src+i}")
        a(f"v_and_b32 v{dst+2*i+1}, s{HIM}, v{src+i}")
def pack(a, dst, src, n):
    for i in range(n): a(f"v_cvt_pk_bf16_f32 v{dst+i}, v{src+2*i}, v{src+2*i+1}")

WV, MODE, SP, LG, TY, RB, TAG, J0, RT, RBL = 48, 49, 50, 51, 52, 53, 54, 55, 56, 57

def st2(a, ins):
    if isinstance(ins, str): ins = [ins]
    l1, l2 = a.label("sts"), a.label("std")
    a(f"s_cmp_eq_u32 s{MODE}, 0")
    a(f"s_cbranch_scc1 {l1}")
    for x in ins: a(x + FSUF)
    a(f"{l2}:")
    a.cold.append(f"{l1}:")
    for x in ins: a.cold.append("    " + x + " sc1")
    a.cold.append(f"    s_branch {l2}")

def common(a):
    a("v_and_b32 v0, 63, v0")
    a(f"s_mov_b32 s{SPIN}, 0x40000")
    a(f"s_mov_b32 s{HIM}, 0xffff0000")
    a.srd_const(24, WS_BYTES); a.srd_const(36, WO_BYTES); a.srd_const(40, X_BYTES)

def prologue(a):
    stamp(a, 0)
    a("s_load_dwordx2 s[28:29], s[0:1], 0")
    a("s_load_dwordx2 s[32:33], s[0:1], 8")
    a(f"v_readfirstlane_b32 s{WV}, v0")
    a("s_load_dwordx2 s[24:25], s[0:1], 80")
    a("s_load_dwordx2 s[36:37], s[0:1], 16")
    a("s_load_dwordx2 s[40:41], s[0:1], 64")
    a("s_load_dwordx8 s[12:19], s[0:1], 32")
    a("s_lshr_b32 s56, s2, 3")
    a(f"s_lshr_b32 s{WV}, s{WV}, 6")
    a("s_cmp_ge_u32 s2, 240")
    a("s_cbranch_scc1 F_pre")
    a(f"s_mul_i32 s{LG}, s56, 86"); a(f"s_lshr_b32 s{LG}, s{LG}, 8")
    a("s_and_b32 s66, s2, 7")
    a(f"s_sub_u32 s{RB}, s66, s{LG}"); a(f"s_mul_i32 s{RB}, s{RB}, 3"); a(f"s_add_u32 s{RB}, s{RB}, s56")
    a(f"s_lshr_b32 s{J0}, s{RB}, 1"); a(f"s_and_b32 s{SP}, s{RB}, 1")
    a(f"s_mul_i32 s{J0}, s{J0}, 86"); a(f"s_sub_u32 s{J0}, s{J0}, 10")
    a.srd_const(28, X_BYTES)
    a(f"s_sub_u32 s60, s{WV}, 4")
    a("s_cbranch_scc1 C_pre")

def cons_pre(a):
    a("C_pre:")
    common(a)
    a(f"s_sub_u32 s{TY}, s{LG}, 5"); a(f"s_cselect_b32 s{TY}, s{LG}, s{TY}")
    a("v_and_b32 v1, 15, v0")
    a("v_lshrrev_b32 v2, 4, v0")
    v_ = sum(d << (4 * i) for i, d in enumerate(DUT))
    a(f"s_mov_b32 s64, {v_ & 0xffffffff:#x}"); a(f"s_movk_i32 s65, {v_ >> 32:#x}"); a(f"s_lshl_b32 s62, s{LG}, 2"); a("s_lshr_b64 s[64:65], s[64:65], s62"); a("s_and_b32 s64, s64, 15")
    a(f"s_mul_i32 s60, s64, 12"); a(f"s_lshl_b32 s61, s{WV}, 2"); a("s_add_u32 s60, s60, s61")
    a("v_add_u32 v10, s60, v2")
    row_off(a, 11, 10)
    a("v_lshl_add_u32 v11, v1, 4, v11")
    a("v_cndmask_b32 v11, v11, 2.0, vcc")
    a.srd_const(32, 1280)
    a(f"s_lshl_b32 s62, s{RB}, 1"); a(f"s_add_u32 s62, s62, s64"); a(f"s_mul_i32 s62, s62, {4*NU}"); a("s_add_u32 s62, s62, s61"); a(f"s_sub_u32 s62, s62, {32*NU}")
    a(f"s_cmp_lt_u32 s{WV}, {NU}"); a("s_cselect_b32 s62, s62, 640")
    a("s_mul_i32 s63, s64, 24"); a(f"s_add_u32 s63, s63, s{RB}"); a(f"s_add_u32 s63, s63, {192*NU}")
    a(f"s_cmp_lt_u32 s64, 8"); a("s_cselect_b32 s65, 3, 0"); a("s_cselect_b32 s62, s63, s62"); a("s_cselect_b32 s63, 192, 1")
    a("v_lshlrev_b32 v58, 4, v0")
    a("v_lshlrev_b32 v59, 2, v0")
    xstamp(a, "kb", 11)
    a("s_waitcnt lgkmcnt(0)")
    a("s_buffer_load_dword s54, s[24:27], 0")
    a("s_mov_b64 s[32:33], s[12:13]")
    a(f"s_cmp_lt_u32 s{WV}, s65")
    a("s_cbranch_scc0 A_nors")
    for i in range(5): a(f"buffer_load_dwordx4 v[{20+4*i}:{23+4*i}], v11, s[28:31], 0 offen offset:{256*i}")
    a("s_branch A_cons")
    a("A_nors:")
    a(f"s_cmp_lg_u32 s{WV}, 3")
    a("s_cbranch_scc1 A_nowr")
    a("buffer_load_dwordx4 v[48:51], v58, s[32:35], 0 offen")
    a("buffer_load_dword v52, v59, s[32:35], 0 offen offset:1024")
    a("A_nowr:")
    a("s_cmp_ge_u32 s62, 640")
    a("s_cbranch_scc1 A_cons")
    a("v_mul_u32_u24 v10, s63, v2")
    a("v_add_u32 v10, s62, v10")
    a("v_lshlrev_b32 v12, 4, v1")
    a("v_mul_u32_u24 v11, 1280, v10")
    a("v_add_u32 v11, v11, v12")
    if UT == 2: a("s_branch A_cons")
    if UT == 3: a("v_mov_b32 v11, v12")
    for i in range(5): a(f"buffer_load_dwordx4 v[{76+4*i}:{79+4*i}], v12, s[32:35], 0 offen offset:{256*i}")
    for i in range(5): a(f"buffer_load_dwordx4 v[{20+4*i}:{23+4*i}], v11, s[36:39], 0 offen offset:{256*i}")

def row_off(a, dst, rho, tmp_shift=None):
    a(f"v_add_u32 v{dst}, s{J0}, v{rho}")
    a(f"v_cmp_gt_i32 vcc, 0, v{dst}")
    a(f"v_lshl_add_u32 v{dst}, v{dst}, 1, s{SP}")
    a(f"v_mul_u32_u24 v{dst}, 1280, v{dst}")

def loader(a):
    a("s_lshl_b32 s62, s60, 2"); a("s_and_b32 s62, s62, 4")
    a("v_bfe_u32 v1, v0, 3, 3")
    a("v_bfe_u32 v2, v0, 4, 2")
    a("v_bitop3_b32 v3, v0, 7, s62 bitop3:0x6a")
    a("s_mul_i32 s62, s60, 24"); a(f"s_add_u32 s62, s62, s{J0}"); a(f"s_lshl1_add_u32 s62, s62, s{SP}"); a("s_mul_i32 s62, s62, 1280")
    a("v_xor_b32 v4, v3, v2")
    a("v_mul_u32_u24 v5, 2560, v1")
    a("v_lshl_add_u32 v4, v4, 4, s62")
    a("s_movk_i32 s63, 20480")
    a("v_add_u32 v10, v4, v5")
    a("v_bitop3_b32 v6, v1, 2, v3 bitop3:0x6a")
    a("v_xad_u32 v11, v10, 64, s63")
    a("v_add_u32 v12, 40960, v10")
    a(f"s_mul_i32 s62, s60, {8*3840}"); a(f"s_lshl_b32 s63, s{LG}, 7"); a("s_add_u32 s62, s62, s63")
    a("v_mul_u32_u24 v5, 3840, v1")
    a("v_lshl_add_u32 v6, v6, 4, s62")
    if XL_: a(f"s_mov_b32 s71, s{LG}")
    else:
        a(f"s_mul_i32 s66, s66, {XROT[0]}"); a(f"s_lshr_b32 s66, s66, {XROT[1]}")
    a("v_add_u32 v13, v5, v6")
    a("s_mul_i32 s65, s60, 3072")
    a("v_add_u32 v14, 256, v13")
    a("v_add_u32 v15, 512, v13")
    a.srd_const(32, WQKV_BYTES)
    a("s_mov_b32 s64, s65")
    a(f"s_add_u32 s70, s65, {3*SLOT}")
    xstamp(a, "kb", 11)
    a("s_waitcnt lgkmcnt(0)")
    stamp(a, 2)
    a("s_call_b64 s[98:99], LD_issue")
    xstamp(a, "st", 10)
    if LD2: a("s_call_b64 s[98:99], LD_issue")
    a("s_branch LD_cont")
    call = lambda: a("s_call_b64 s[98:99], LD_issue")
    a("LD_issue:")
    if XL_:
        a("s_cmp_ge_u32 s66, s71"); a("s_addc_u32 s68, s66, 0")
    if GRP:
        a("s_lshl_b32 s67, s68, 7"); a("s_mul_i32 s68, s68, 245760"); a("s_add_u32 s69, s68, 122880")
        X_ = [(1024 * j, f"buffer_load_dwordx4 v{10+j}, s[28:31], s67 offen lds") for j in range(3)]
        W_ = [(12288 * (1 + h), f"buffer_load_dwordx4 v{13+p}, s[32:35], s{68+h} offen offset:{1024*p} lds") for h in range(2) for p in range(3)]
        cur = None
        for c_ in GRP:
            off, ins = (X_ if c_ == "x" else W_).pop(0)
            if off != cur: a(f"s_add_u32 m0, s65, {off}"); cur = off
            a(ins)
        a("s_add_u32 s66, s66, 1"); a("s_cmp_eq_u32 s66, 9"); a("s_cselect_b32 s66, 0, s66")
    else:
        a("s_mov_b32 m0, s65")
        a(f"s_lshl_b32 s67, s{68 if XL_ else 66}, 7")
        a("buffer_load_dwordx4 v10, s[28:31], s67 offen lds")
        a("s_add_u32 m0, s65, 1024")
        a(f"s_mul_i32 s68, s{68 if XL_ else 66}, 245760")
        a("buffer_load_dwordx4 v11, s[28:31], s67 offen lds")
        a("s_add_u32 m0, s65, 2048")
        a("s_add_u32 s69, s68, 122880")
        a("buffer_load_dwordx4 v12, s[28:31], s67 offen lds")
        a("s_add_u32 m0, s65, 12288")
        a("s_add_u32 s66, s66, 1")
        for p in range(3): a(f"buffer_load_dwordx4 v{13+p}, s[32:35], s68 offen offset:{1024*p} lds")
        a("s_add_u32 m0, s65, 24576")
        a(f"s_cmp_eq_u32 s66, {9 if XL_ else 10}"); a("s_cselect_b32 s66, 0, s66")
        for p in range(3): a(f"buffer_load_dwordx4 v{13+p}, s[32:35], s69 offen offset:{1024*p} lds")
    a(f"s_add_u32 s65, s65, {SLOT}")
    a("s_cmp_eq_u32 s65, s70")
    a("s_cselect_b32 s65, s64, s65")
    a("s_setpc_b64 s[98:99]")

def loader2(a):
    call = lambda: a("s_call_b64 s[98:99], LD_issue")
    a("LD_cont:")
    main_a = a
    class L(list):
        def __call__(self, x): self.append(x)
        srd_const = Asm.srd_const
    a = L()
    common(a)
    a(f"s_sub_u32 s{TY}, s{LG}, 5"); a(f"s_cselect_b32 s{TY}, s{LG}, s{TY}")
    a("s_buffer_load_dword s54, s[24:27], 0")
    a("v_lshl_add_u32 v4, s60, 3, v1")
    a("v_mul_u32_u24 v5, 1280, v4")
    a("v_lshlrev_b32 v7, 1, v2"); a("v_bitop3_b32 v7, v0, 7, v7 bitop3:0x6a")
    a("v_lshl_add_u32 v5, v7, 4, v5")
    a(f"v_lshl_add_u32 v16, s{LG}, 7, v5")
    a(f"s_lshl_b32 s46, s{RB}, 11")
    a(f"s_add_u32 s46, s46, {WS_RS}")
    a("s_mul_i32 s62, s60, 24")
    a("v_add_u32 v17, s62, v0")
    a("v_lshlrev_b32 v18, 4, v17")
    a("v_cmp_gt_u32 vcc, 24, v0")
    a("v_add_u32 v19, 72, v0")
    a("v_lshlrev_b32 v19, 4, v19")
    a("v_cndmask_b32 v18, v19, v18, vcc")
    a(f"s_lshl_b32 s62, s{LG}, 2"); a("s_add_u32 s62, s62, s60"); a("s_lshl_b32 s62, s62, 8"); a("s_sub_u32 s62, s62, s46"); a(f"s_add_u32 s62, s62, {WS_U - (72 + 34) * 16}")
    a("v_add_u32 v19, s62, v19")
    a("v_cmp_lt_u32 vcc, 33, v0")
    a("v_cndmask_b32 v18, v18, v19, vcc")
    a("v_cmp_lt_u32 vcc, 49, v0")
    a("v_cndmask_b32 v18, v18, 2.0, vcc")
    if TR3:
        a("s_cmp_eq_u32 s60, 0"); a("s_cselect_b32 s62, 24, 0"); a("v_cmp_gt_u32 vcc, s62, v0"); a("v_cndmask_b32 v10, v10, 2.0, vcc")
    a("#")
    for i in range(4): a(f"v_mov_b32 v{28+i}, 0")
    a("s_lshl_b32 s62, s60, 6")
    a("v_add_u32 v4, s62, v0")
    a("v_lshlrev_b32 v35, 4, v4")
    a(f"v_add_u32 v35, {PB}, v35")
    for i in range(6): a(f"ds_write_b128 v35, v[28:31] offset:{4096*i}")
    a("v_lshrrev_b32 v5, 1, v4"); a("v_min_u32 v5, 61, v5"); a(f"v_mul_u32_u24 v5, {QS}, v5"); a("v_and_b32 v6, 1, v4"); a("v_lshl_add_u32 v5, v6, 4, v5")
    a(f"v_add_u32 v5, {QKV + 34*QS + VO}, v5")
    a("ds_write_b128 v5, v[28:31]")
    a(f"v_mov_b32 v6, {ZERO}")
    a("ds_write_b64 v6, v[28:29]")
    a("#")
    if NPF:
        a("s_lshr_b32 s61, s2, 3"); a(f"s_mul_i32 s62, s{LG}, 3"); a("s_sub_u32 s61, s61, s62"); a("s_lshl2_add_u32 s61, s61, s60"); a(f"s_mul_i32 s61, s61, {NPF}")
        a(f"s_lshl_b32 s62, s{LG}, 6"); a("s_sub_u32 s61, s62, s61"); a(f"s_add_u32 s61, s61, {191 + 640}")
        a("v_sub_u32 v37, s61, v0")
        for i in range(2):
            a("v_subrev_u32 v5, 640, v37"); a("v_min_u32 v37, v37, v5")
        a("v_mul_u32_u24 v37, 1280, v37"); a(f"v_lshl_add_u32 v37, s{LG}, 7, v37")
        a(f"v_cmp_gt_u32 vcc, {NPF}, v0"); a("v_cndmask_b32 v37, 2.0, v37, vcc")
    a("v_and_b32 v4, 31, v0")
    a("v_lshlrev_b32 v5, 7, v4")
    a(f"s_lshl_b32 s62, s{LG}, 11")
    a("v_add_u32 v6, s62, v5")
    a(f"s_lshl_b32 s62, s{LG}, 8"); a(f"s_add_u32 s62, s62, {T_ST - 3072}")
    a("v_add_u32 v7, s62, v5")
    a("v_cmp_lt_u32 vcc, 23, v4")
    a("v_cndmask_b32 v6, v6, v7, vcc")
    a("v_and_b32 v7, 128, v5")
    a(f"v_add_u32 v7, {T_FL}, v7")
    a("v_cmp_lt_u32 vcc, 25, v4")
    a("v_cndmask_b32 v6, v6, v7, vcc")
    a("v_lshrrev_b32 v7, 5, v0")
    a(f"v_mul_u32_u24 v7, {T_SZ}, v7")
    a("v_add_u32 v36, v6, v7")
    if TRIM:
        a("s_mov_b32 vcc_hi, 0xfcff0000"); a("s_cmp_eq_u32 s60, 0"); a("s_cselect_b32 vcc_lo, 0xf0ff5555, vcc_hi")
        a("v_cndmask_b32 v36, v36, 2.0, vcc")
    a("s_waitcnt lgkmcnt(0)")
    a(f"s_add_u32 s{TAG}, s{TAG}, {TAGINC}")
    a("s_lshl_b32 s62, s60, 10")
    a(f"s_add_u32 s62, s62, {WO_L + 6*4096}")
    a(f"s_add_u32 s63, s{LG}, 3"); a("s_sub_u32 s61, s63, 10"); a("s_cselect_b32 s63, s63, s61"); a(f"s_mul_i32 s63, s63, {64*1280}")
    pieces = [[]]
    for x in a:
        if x == "#": pieces.append([])
        else: pieces[-1].append(x)
    pieces += [[f"s_call_b64 s[98:99], S_late{q}"] for q in ("", "2", "3", "4")]
    a = main_a
    def setup(pos):
        for p_, at in zip(pieces, LPOS):
            if at == pos:
                for x in p_: a(x)
    if LPRIO: a(f"s_setprio {LPRIO}")
    setup(-1)
    if LPRIO and LPOFF: a("s_setprio 0")
    xstamp(a, "st", 11)
    if not LD2: call()
    xstamp(a, "st", 12)
    def pretouch(pos):
        xl, o, dn = PXL == pos, PO == pos, PDN == pos
        if not (xl or o or dn): return
        l1, l2 = a.label("pf"), a.label("pf")
        a("s_cmp_eq_u32 s60, 3")
        a(f"s_cbranch_scc1 {l1}")
        if xl or o:
            a(f"s_mul_i32 s67, s{RB}, 6"); a("s_lshl_b32 s68, s60, 1"); a("s_add_u32 s67, s67, s68")
            a(f"s_mul_i32 s67, s67, {T_SZ}"); a(f"s_add_u32 s67, s67, {WS_T}")
            if not (xl and o):
                m_ = "0xffff0000" if xl else "0x0000ffff"
                a(f"s_mov_b32 exec_lo, {m_}"); a(f"s_mov_b32 exec_hi, {m_}")
            a("buffer_load_dword v182, v36, s[24:27], s67 offen sc1")
            a("s_mov_b64 exec, -1")
        a(f"s_branch {l2}")
        a(f"{l1}:")
        if xl:
            a("v_lshlrev_b32 v4, 7, v0")
            a("s_mov_b64 exec, 7")
            a(f"buffer_load_dword v182, v4, s[24:27], s{ESA} offen sc1")
            a("s_mov_b64 exec, -1")
        a(f"{l2}:")
    won = [0]
    def wo(n):
        for i in range(n):
            a("s_mov_b32 m0, s62")
            a("s_add_u32 s62, s62, 4096")
            a("buffer_load_dwordx4 v16, s[36:39], s63 offen lds")
            a(f"s_add_u32 s63, s63, {32*1280}")
            if won[0] % 2:
                a(f"s_cmp_eq_u32 s63, {WO_BYTES}"); a("s_cselect_b32 s63, 0, s63")
            won[0] += 1
    if PT == 's':
        a(f"s_sub_u32 s46, s{FPA}, {T_FL}")
        a(f"s_lshl_b32 s61, s{LG}, 2"); a("s_add_u32 s61, s61, s60")
        a("s_lshl_b32 s67, s61, 9"); a("s_add_u32 s18, s46, s67")
        a("s_lshl_b32 s67, s61, 8"); a("s_add_u32 s19, s46, s67")
        a("s_lshl_b32 s67, s61, 6"); a("s_add_u32 s46, s46, s67")
    def bubble():
        if not WOF: a("buffer_load_dword v180, v38, s[36:39], 0 offen")
        if "noffpf" not in DBG: a("buffer_load_dword v181, v39, s[16:19], 0 offen")
    if PT == 'stag':
        a(f"s_add_u32 s46, s{RBL}, s{LG}")
        for q in range(3):
            a(f"s_sub_u32 s61, s46, {STG[1]}"); a("s_cselect_b32 s46, s46, s61")
    jobs = []
    def srd16(lo, hi): return [f"s_mov_b32 s16, s{lo}", f"s_and_b32 s17, s{hi}, 0xffff", f"s_mov_b32 s18, {FF_BYTES}", "s_mov_b32 s19, 0x00020000"]
    ld_ = lambda off: f"s_buffer_load_dword s59, s[16:19], s58 offset:{off}"
    if SPF:
        jobs += ["s_bitcmp0_b32 s60, 0", "s_cselect_b32 s16, s14, s16", "s_cselect_b32 s17, s15, s17", "s_mov_b64 s[14:15], s[18:19]"] + srd16(16, 17)[1:]
        if "1" in SPJ:
            jobs += ["s_lshr_b32 s58, s60, 1", "s_lshl1_add_u32 s58, s2, s58", "s_mul_i32 s61, s58, 10923", "s_lshr_b32 s61, s61, 16", "s_mul_i32 s67, s61, 6", "s_sub_u32 s58, s58, s67",
                     "s_and_b32 s67, s58, 1", "s_mul_i32 s67, s67, 320", "s_add_u32 s61, s61, s67", "s_mul_i32 s61, s61, 3072", "s_lshr_b32 s58, s58, 1", "s_lshl_b32 s58, s58, 10", "s_add_u32 s58, s58, s61"]
            jobs += [ld_((32 + 160 * q) * 3072 + 384 + 64 * h) for q in range(2) for h in range(2)]
        if "4" in SPJ:
            jobs += ["s_lshr_b32 s58, s60, 1", "s_lshl1_add_u32 s58, s2, s58", "s_mul_i32 s61, s58, 21846", "s_lshr_b32 s61, s61, 16", "s_mul_i32 s67, s61, 3", "s_sub_u32 s58, s58, s67",
                     "s_mul_i32 s61, s61, 3072", "s_lshl_b32 s58, s58, 10", "s_add_u32 s58, s58, s61", f"s_cmp_lt_u32 s61, {SPR * 3072}", "s_cselect_b32 s58, 2.0, s58"]
            for qq in range(2):
                jobs += [ld_(160 * q * 3072 + 384 + 64 * h) for q in range(2) for h in range(2)]
                if qq == 0: jobs.append(f"s_add_u32 s58, s58, {320*3072}")
        if "6" in SPJ and XL_:
            jobs += [f"s_lshl2_add_u32 s58, s{RB}, s60", "s_mul_i32 s61, s58, 86", "s_lshr_b32 s61, s61, 8", "s_mul_i32 s67, s61, 3", "s_sub_u32 s58, s58, s67", "s_mul_i32 s58, s58, 1280",
                     "s_mul_i32 s61, s61, 7680", "s_add_u32 s58, s58, s61", f"s_mul_i32 s61, s{LG}, {245760 + 128}", "s_add_u32 s58, s58, s61"]
            jobs += [f"s_buffer_load_dword s59, s[32:35], s58 offset:{3840*r_ + 64*h}" for r_ in range(2) for h in range(2)]
        if "5" in SPJ:
            jobs += [f"s_mul_i32 s58, s60, {RSTR}", f"s_add_u32 s58, s58, s{CRB}"]
            for r_ in range(NREP // 4): jobs += [f"s_buffer_load_dword s59, s[24:27], s58 offset:{64*j + 4*r_*RSTR}" for j in range(4)]
            jobs += ["s_lshl_b32 s58, s60, 6", f"s_add_u32 s58, s58, s{CRB}", f"s_sub_u32 s58, s58, {WS_ROWA - WS_ROWB}", "s_buffer_load_dword s59, s[24:27], s58"]
        if "7" in SPJ:
            jobs += [f"s_lshl2_add_u32 s61, s{LG}, s60", "s_lshl_b32 s58, s61, 9", f"s_add_u32 s58, s58, s{FPA}", f"s_sub_u32 s58, s58, {T_FL}"]
            for t in range(6): jobs += [f"s_buffer_load_dword s59, s[24:27], s58 offset:{t*T_SZ + 64*j}" for j in range(8) if t or (j & 2)]
            jobs += [f"s_lshl2_add_u32 s61, s{LG}, s60", "s_lshl_b32 s58, s61, 6", f"s_add_u32 s58, s58, s{FPA}", f"s_sub_u32 s58, s58, {T_FL - T_ST}"]
            jobs += [f"s_buffer_load_dword s59, s[24:27], s58 offset:{t*T_SZ}" for t in range(6)]
            jobs += ["s_lshl_b32 s61, s60, 6", f"s_add_u32 s58, s61, s{FPA}", "s_buffer_load_dword s59, s[24:27], s58"]
            jobs += ["s_lshl_b32 s61, s60, 7", f"s_add_u32 s58, s61, s{ESA}", "s_buffer_load_dword s59, s[24:27], s58", "s_buffer_load_dword s59, s[24:27], s58 offset:64"]
        if "2" in SPJ:
            jobs += ["s_lshr_b32 s58, s2, 3", "s_lshr_b32 s61, s60, 1", "s_lshl1_add_u32 s58, s58, s61", "s_add_u32 s58, s58, 100", "s_mul_i32 s58, s58, 3072",
                     "s_and_b32 s61, s2, 7", "s_mul_i32 s61, s61, 384", "s_add_u32 s58, s58, s61"]
            for q in range(4):
                jobs += [ld_(64 * h) for h in range(6)]
                if q < 3: jobs.append(f"s_add_u32 s58, s58, {160*3072}")
        if "3" in SPJ:
            jobs += srd16(14, 15)[:2]
            jobs += ["s_and_b32 s58, s2, 7", "s_mul_i32 s58, s58, 245760", "s_lshr_b32 s61, s2, 3", "s_lshl2_add_u32 s61, s61, s60", "s_lshl_b32 s61, s61, 11", "s_add_u32 s58, s58, s61"]
            jobs += [ld_(64 * j) for j in range(32)]
    def hop_a():
        a("s_mov_b64 exec, 0")
        for q in range(3):
            a(f"s_cmp_eq_u32 s60, {q}"); a(f"s_cbranch_scc1 HA{q}_0")
        a(f"s_branch HA3_0")
        a(f"HA_ret:")
        a("s_mov_b64 exec, -1")
        a.hops.append(("HA", "AT_start", "B_start" if HSP else "L_fin", 4))
    def wreg(lo, hi):
        if lo == hi: return
        a(f"v_subrev_u32 v98, {16*1280}, v16")
        for i in range(lo, hi):
            if i == lo or i % 2 == 0:
                a(f"s_add_u32 s61, s{LG}, {i // 2}"); a("s_sub_u32 s67, s61, 10"); a("s_cselect_b32 s61, s61, s67"); a(f"s_mul_i32 s61, s61, {64*1280}")
            if i % 2: a(f"s_add_u32 s61, s61, {32*1280}")
            a(f"buffer_load_dwordx4 v[{WRG+8*i}:{WRG+8*i+3}], v16, s[36:39], s61 offen")
            a(f"buffer_load_dwordx4 v[{WRG+8*i+4}:{WRG+8*i+7}], v98, s[36:39], s61 offen")
    def run_jobs(k):
        while jobs and k:
            x = jobs.pop(0); a(x); k -= x.startswith("s_buffer")
    run_jobs(SPS.get(-1, 0))
    a("s_waitcnt vmcnt(9)")
    for s in range(10):
        lstamp(a, "iss", 3 + s)
        if s: a(f"s_waitcnt vmcnt({9 if s < 9 else WOA})" + (" lgkmcnt(0)" if s == 9 else ""))
        lstamp(a, "pre", 3 + s)
        a("s_barrier")
        lstamp(a, "post", 3 + s)
        if s in CST: cstamp(a, 3 + 2 * CST.index(s))
        if s == LPA: a("s_setprio 3")
        if s == 9 and LPA < 9: a("s_setprio 0")
        if PT == 'stag':
            if STG[0] <= s < STG[0] + STG[1]:
                lab = a.label("nb")
                a(f"s_cmp_lg_u32 s46, {s - STG[0]}")
                a(f"s_cbranch_scc1 {lab}")
                a("s_call_b64 s[98:99], LD_bub")
                a(f"{lab}:")
        elif s == BUB:
            bubble()
        if s < 8: pretouch(f"b{s}")
        if WREG and s == WRE:
            a("s_cmp_lt_u32 s60, 2"); a("s_cbranch_scc1 LD_nwr"); wreg(0, WRN); a("LD_nwr:")
        if NPF and s == PFW: a("buffer_load_dword v181, v37, s[36:39], 0 offen")
        if s == GAT: a("buffer_load_dwordx4 v[20:23], v18, s[24:27], s46 offen sc1")
        if SPS: run_jobs(SPS.get(s, 0))
        elif s >= SP0:
            n = 0
            while jobs and (n < SPF or not jobs[0].startswith("s_buffer")):
                x = jobs.pop(0); a(x); n += x.startswith("s_buffer")
        if s == 7 and XL_:
            a(f"s_mov_b32 s66, s{LG}"); a("s_movk_i32 s71, 99")
        if s < 8: call()
        setup(s)
        if s in PACE: a(f"s_sleep {PACE[s]}")
        if HAT == s: hop_a()
        if PT == 's' and SP0 <= s < SP0 + 6:
            t_ = (s - SP0) * T_SZ
            for i in range(4):
                for hh in range(SH): a(f"s_buffer_load_dword s17, s[24:27], s18 offset:{t_ + 128*i + 64*hh}")
            for i in range(2):
                for hh in range(SH): a(f"s_buffer_load_dword s17, s[24:27], s19 offset:{t_ + T_XL + 128*i + 64*hh}")
            a(f"s_buffer_load_dword s17, s[24:27], s46 offset:{t_ + T_ST}")
            if s == SP0:
                for i in range(4): a(f"s_buffer_load_dword s17, s[24:27], s{FPA} offset:{64*i}")
        if s == 8:
            a(f"v_mov_b32 v24, {WRL + 1280}")
            a("ds_read_b32 v24, v24")
            wo(WO0)
            a("s_mov_b32 exec_hi, 3")
            a(f"v_cmp_ne_u32 vcc, s{TAG}, v22")
            a("s_cbranch_vccz LD_rs")
            a("LD_rsp:")
            a("buffer_load_dwordx4 v[20:23], v18, s[24:27], s46 offen sc1")
            a("s_waitcnt vmcnt(0)")
            a(f"v_cmp_ne_u32 vcc, s{TAG}, v22")
            a("s_cbranch_vccz LD_rs")
            spin(a, "LD_rsp")
            a("LD_rs:")
            a("s_getreg_b32 s61, hwreg(HW_REG_XCC_ID)")
            a("v_cmp_ne_u32 vcc, s61, v20")
            a("s_lshr_b64 vcc, vcc, 24")
            a(f"s_cselect_b32 s{MODE}, 0, {1 if FAST else 0}")
            a("s_lshl_b32 s61, s60, 5"); a(f"s_add_u32 s61, s61, {UL - 68}")
            a("s_mov_b32 exec_hi, 0x3fffc"); a("s_mov_b32 exec_lo, 0")
            a(f"v_cmp_eq_u32 vcc, s{TAG}, v22")
            a("v_lshl_add_u32 v4, v0, 1, s61")
            a("s_waitcnt lgkmcnt(0)")
            a(f"v_mul_f32 v24, {f32(-1.0/640)}, v24")
            a("v_fmac_f32 v21, v20, v24")
            a("v_cndmask_b32 v21, 0, v21, vcc")
            a("ds_write_b16_d16_hi v4, v21")
            a("s_mov_b32 exec_hi, 0"); a("s_mov_b32 exec_lo, 0xffffff")
            a("v_lshlrev_b32 v4, 3, v17")
            a(f"v_add_u32 v4, {STAT}, v4")
            a("ds_write_b64 v4, v[20:21]")
            a(f"v_mov_b32 v4, {MODEW}"); a(f"v_mov_b32 v5, s{MODE}")
            a("ds_write_b32 v4, v5")
            a("ds_write_b64 v4, v[28:29] offset:8"); a("ds_write_b64 v4, v[28:29] offset:16"); a("ds_write_b64 v4, v[28:29] offset:24"); a("ds_write_b64 v4, v[28:29] offset:32")
            a("s_mov_b64 exec, -1")
            wo(WOA - WO0)
    assert not jobs
    pretouch('b9')
    wo(14 - WOA)
    pretouch('b9late')
    if PT == 'stag' and "nodnpf" not in DBG:
        a("s_cmp_lg_u32 s60, 3")
        a("s_cbranch_scc1 LD_nd")
        a.srd(32, 14, FF_BYTES)
        a("s_and_b32 s67, s2, 7"); a("s_mul_i32 s67, s67, 245760"); a("s_lshr_b32 s68, s2, 3"); a("s_lshl_b32 s68, s68, 13"); a("s_add_u32 s67, s67, s68")
        a("buffer_load_dword v182, v37, s[32:35], s67 offen")
        a("LD_nd:")
    if WREG:
        a("s_cmp_lt_u32 s60, 2")
        a("s_cbranch_scc1 LD_s10")
        wreg(WRN if WRE >= 0 else 0, 6)
        a("s_lshl_b32 s62, s60, 10"); a(f"s_add_u32 s62, s62, {WO_L - 2048}"); a("v_lshl_add_u32 v99, v0, 4, s62")
        stamp(a, 1)
        a("s_barrier")
        a("s_branch AT_67")
        a("LD_s10:")
    setup(10)
    stamp(a, 1)
    assert WOA <= 9
    if WLATE:
        a("v_mov_b32 v99, v16")
    else: wo(20 - WOA - WOB)
    if HAT == 10: hop_a()
    a("s_branch AT_start")
    if PT == 'stag':
        a("LD_bub:")
        bubble()
        a("s_cmp_eq_u32 s60, 3")
        a("s_cbranch_scc1 LD_bub2")
        a(f"s_mul_i32 s67, s{RB}, 6"); a("s_lshl_b32 s68, s60, 1"); a("s_add_u32 s67, s67, s68")
        a(f"s_mul_i32 s67, s67, {T_SZ}"); a(f"s_add_u32 s67, s67, {WS_T}")
        a("buffer_load_dword v182, v36, s[24:27], s67 offen sc1")
        a("LD_bub2:")
        a("s_setpc_b64 s[98:99]")

XR, WR, WALL, XOFF = 232, 240, 248, 253
ACC = 100
def consumer(a):
    a("A_cons:")
    if SW0:
        a(f"s_add_u32 s58, s{LG}, 96"); a(f"s_cmp_eq_u32 s{WV}, 3"); a("s_cselect_b32 s58, s58, s60"); a(f"s_lshl_b32 s59, s{RB}, 7"); a("s_add_u32 s58, s58, s59"); a("s_lshl_b32 s58, s58, 4")
        a(f"s_buffer_load_dword s59, s[24:27], s58 offset:{WS_RS}")
        a("s_lshl_b32 s58, s62, 4"); a(f"s_add_u32 s58, s58, {WS_U}")
        a("s_sub_u32 s66, 3, s65"); a(f"s_add_u32 s66, s66, s{WV}"); a("s_cmp_lt_u32 s66, 3"); a("s_cselect_b32 s58, 2.0, s58")
        for g_ in range(4 - NU): a(f"s_buffer_load_dword s59, s[24:27], s58 offset:{3072*g_}")
    xstamp(a, "st", 10)
    S = [20, 56]
    a("v_mov_b32 v99, 2.0")
    a("v_lshrrev_b32 v3, 1, v1")
    a("v_xor_b32 v3, v3, v2")
    a("v_lshlrev_b32 v3, 4, v3")
    a("v_lshl_add_u32 v4, v1, 7, v3")
    a("v_xor_b32 v5, 64, v4")
    a("v_cmp_eq_u32 vcc, 0, v1")
    a(f"v_mov_b32 v3, {ONES}")
    a("v_cndmask_b32 v6, v4, v3, vcc")
    a("v_cndmask_b32 v7, v5, v3, vcc")
    a("v_cndmask_b32 v8, 1, 0, vcc")
    a("v_bfe_u32 v14, v0, 2, 2")
    a("v_and_b32 v15, 3, v0")
    a("v_lshrrev_b32 v16, 1, v14")
    a("v_and_b32 v17, 1, v2")
    a("v_lshl_or_b32 v16, v17, 1, v16")
    a(f"v_xor_b32 v16, s{WV}, v16")
    a("v_lshlrev_b32 v16, 5, v16")
    a("v_lshl_add_u32 v16, v15, 3, v16")
    a("v_lshl_add_u32 v16, v14, 7, v16")
    a("v_mul_u32_u24 v17, 3072, v2")
    a("v_add_u32 v9, v16, v17")
    a("v_mov_b32 v16, 0x3f803f80"); a("v_mov_b32 v17, v16"); a("v_mov_b32 v18, v16"); a("v_mov_b32 v19, v16")
    a("ds_write_b128 v3, v[16:19]")
    for i in range(36): a(f"v_mov_b64 v[{ACC+2*i}:{ACC+2*i+1}], 0")
    for q in ("", "2", "3", "4"): a(f"s_call_b64 s[98:99], S_late{q}")
    a("s_branch A_c2")
    setup_late(a)
    a("A_c2:")
    a("s_waitcnt lgkmcnt(0)")
    a(f"s_add_u32 s{TAG}, s{TAG}, {TAGINC}")
    a(f"s_lshl_b32 s63, s{RB}, 11")
    a(f"s_add_u32 s63, s63, {WS_RS}")
    a(f"v_mov_b32 v42, s{TAG}")
    xstamp(a, "st", 11)
    a("v_lshlrev_b32 v10, 4, v10")
    def rowsums(second):
        for i in range(5):
            a(f"s_waitcnt vmcnt({4-i})")
            for d in range(4):
                o = 4 * (d & 1); z = lambda r: "0" if i == 0 and d < 2 else f"v{r}"
                a(f"v_dot2_f32_bf16 v{40+o}, v{20+4*i+d}, v16, {z(40+o)}")
                a(f"v_dot2_f32_bf16 v{41+o}, v{20+4*i+d}, v{second+4*i+d}, {z(41+o)}")
    a(f"s_cmp_lt_u32 s{WV}, s65")
    a("s_cbranch_scc0 A_nos")
    rowsums(20)
    a("A_red:")
    a("v_add_f32 v40, v40, v44"); a("v_add_f32 v41, v41, v45")
    for sh in (1, 2, 4, 8):
        a(f"v_add_f32_dpp v40, v40, v40 row_ror:{sh} row_mask:0xf bank_mask:0xf")
        a(f"v_add_f32_dpp v41, v41, v41 row_ror:{sh} row_mask:0xf bank_mask:0xf")
    a(f"s_cselect_b32 s64, s63, {WS_U}")
    a("s_cbranch_scc0 A_nln")
    ln_stats(a, 40, 41)
    a("A_nln:")
    a("s_mov_b32 exec_lo, 0x00010001"); a("s_mov_b32 exec_hi, 0x00010001")
    a("buffer_store_dwordx3 v[40:42], v10, s[24:27], s64 offen sc1")
    a("s_mov_b64 exec, -1")
    a("A_w3:")
    a(f"s_cmp_lg_u32 s{WV}, 3")
    a("s_cbranch_scc1 A_go")
    a("s_getreg_b32 s61, hwreg(HW_REG_XCC_ID)")
    a(f"s_lshl_b32 s64, s{LG}, 4"); a("s_add_u32 s64, s64, 1536")
    a("v_mov_b32 v44, s61"); a("v_mov_b32 v43, s64"); a(f"v_mov_b32 v46, s{TAG}")
    a("s_mov_b64 exec, 1")
    a("buffer_store_dwordx3 v[44:46], v43, s[24:27], s63 offen sc1")
    a("s_mov_b64 exec, -1")
    a(f"v_add_u32 v58, {WRL}, v58"); a(f"v_add_u32 v59, {WRL}, v59")
    a("s_cmp_lt_u32 s62, 640")
    a("s_cbranch_scc1 A_w3l")
    a("s_waitcnt vmcnt(1)")
    a("A_w3l:")
    a("ds_write_b128 v58, v[48:51]")
    a("ds_write_b32 v59, v52 offset:1024")
    a("v_dot2_f32_bf16 v25, v48, v16, 0")
    for i in range(1, 5): a(f"v_dot2_f32_bf16 v25, v{48+i}, v16, v25")
    for sh in (1, 2, 4, 8): a(f"v_add_f32_dpp v25, v25, v25 row_ror:{sh} row_mask:0xf bank_mask:0xf")
    a("v_mov_b32 v26, v25"); a("v_permlane32_swap_b32 v25, v26"); a("v_add_f32 v25, v25, v26")
    a("v_mov_b32 v26, v25"); a("v_permlane16_swap_b32 v25, v26"); a("v_add_f32 v25, v25, v26")
    a(f"v_mov_b32 v58, {WRL}")
    a("ds_write_b32 v58, v25 offset:1280")
    a("s_waitcnt lgkmcnt(0)")
    a("s_branch A_go")
    a("A_nos:")
    a("s_cmp_ge_u32 s62, 640")
    a("s_cbranch_scc1 A_w3")
    if UT == 1:
        a("s_waitcnt vmcnt(0)"); a("s_branch A_w3")
    rowsums(76)
    a("s_branch A_red")
    a("A_go:")
    a("v_lshlrev_b32 v18, 3, v1")
    a(f"v_add_u32 v18, {STAT}, v18")
    a(f"v_mul_u32_u24 v3, {QS}, v1")
    a("v_lshl_add_u32 v3, v2, 3, v3")
    a(f"s_lshl_b32 s60, s{WV}, 5")
    a(f"s_add_u32 s60, s60, {QKV}")
    a("v_add_u32 v3, s60, v3")
    a(f"v_mov_b32 v17, {MODEW}")
    a("s_mov_b32 s60, 0")
    def addr():
        return ["v_add_u32 v14, s60, v9", "v_mad_u32_u24 v10, v8, s60, v6", "v_add_u32 v12, s60, v4", "v_mad_u32_u24 v11, v8, s60, v7", "v_add_u32 v13, s60, v5"]
    def reads(ks):
        s = S[ks]; r = []
        for p in range(3):
            for h in range(2):
                r.append(f"ds_read_b64_tr_b16 v[{s+24+4*p+2*h}:{s+25+4*p+2*h}], v14 offset:{12288+ks*12288+p*1024+h*512}")
        r.append(f"ds_read_b128 v[{s}:{s+3}], v{10+ks}")
        for rt in range(1, 6):
            r.append(f"ds_read_b128 v[{s+4*rt}:{s+4*rt+3}], v{12+ks} offset:{rt*2048}")
        return r
    def mfmas(ks):
        s = S[ks]; m = []
        for rt in range(6):
            for p in range(3):
                c = ACC + 12 * rt + 4 * p
                m.append(f"v_mfma_f32_16x16x32_bf16 v[{c}:{c+3}], v[{s+24+4*p}:{s+27+4*p}], v[{s+4*rt}:{s+4*rt+3}], v[{c}:{c+3}]")
        return m
    def weave(m, r, per=1):
        r = list(r)
        for ins in m:
            a(ins)
            for x in r[:per]: a(x)
            r = r[per:]
        for x in r: a(x)
    for x in addr(): a(x)
    a("s_mov_b32 s61, 0")
    xstamp(a, "st", 12)
    a("s_barrier")
    stamp(a, 1)
    if PROF and LDP == "cyc": a("s_memtime s[78:79]")
    if PROF: a("s_waitcnt lgkmcnt(0)")
    for x in reads(0): a(x)
    a("A_loop:")
    a("s_waitcnt lgkmcnt(0)")
    sal = [f"s_add_u32 s60, s60, {SLOT}", "s_add_u32 s61, s61, 1", f"s_cmp_eq_u32 s60, {3*SLOT}", "s_cselect_b32 s60, 0, s60", "s_cmp_lt_u32 s61, 9"]
    snake = lambda mm: [mm[3*rt + (p if rt % 2 == 0 or not SNK else 2 - p)] for rt in range(6) for p in range(3)]
    weave(snake(mfmas(0)), reads(1) + sal)
    m = snake(mfmas(1))
    a("s_waitcnt lgkmcnt(0)")
    ad = addr()
    weave(m[:BARPOS], ad if BARPOS >= 5 else ad[:3], 1 if BARPOS >= 5 else 2)
    a("s_barrier")
    weave(m[BARPOS:], reads(0) + ([] if BARPOS >= 5 else ad[3:]), 1 if BARPOS <= 5 else (2 if BARPOS <= 12 else 3))
    a("s_cbranch_scc1 A_loop")
    a("A_tail:")
    xstamp(a, "tl", 10)
    m0 = mfmas(0); r1 = reads(1); m = mfmas(1)
    a("s_waitcnt lgkmcnt(0)")
    st = [f"ds_read_b64 v[{MN+2*rt}:{MN+2*rt+1}], v18 offset:{128*rt}" for rt in range(6)] + ["ds_read_b32 v17, v17"]
    qk = lambda mm, rt: [mm[3*rt], mm[3*rt+1]]
    cover = [m0[3*rt+2] for rt in range(6)] + qk(m0, 0) + qk(m0, 1)
    if VLATE:
        r1[4:6] = [x.replace("v[88:89]", "v[96:97]").replace("v[90:91]", "v[98:99]") for x in r1[4:6]]
        a("v_mov_b32 v1, v13"); a("v_mov_b32 v2, v11")
    if VLATE == 2:
        cover = [x for rt in range(5) for x in qk(m0, rt)]
        a("v_mov_b64 v[180:181], v[52:53]"); a("v_mov_b64 v[182:183], v[54:55]")
    rd_ = r1[:4] + r1[6:8] + st[:2] + r1[8:] + r1[4:6] + st[2:]
    weave(cover, rd_, 2)
    a(f"s_waitcnt lgkmcnt({len(rd_) - 8})")
    xstamp(a, "tl", 11)
    seq_ = qk(m, 0) + qk(m, 1) + [x for rt in range(2, 6) for x in qk(m0, rt) + qk(m, rt)] + [m[3*rt+2] for rt in range(6)]
    if VLATE == 1: seq_ = seq_[:-6]
    if VLATE == 2: seq_ = qk(m, 0) + qk(m, 1) + qk(m0, 5) + [x for rt in range(2, 6) for x in qk(m, rt)]
    cs = [f"v_mov_b32_dpp v{20+i}, v{ACC+i} row_newbcast:0 row_mask:0xf bank_mask:0xf" for i in range(8)]
    k_ = at_consts()
    weave(seq_[:FQ0], rk_reads() + ["s_waitcnt lgkmcnt(7)"], 2)
    rest = cs + fold(0, (0, 1)) + fold(1, (0, 1)) + [f"v_readfirstlane_b32 s{MODE}, v17"] + k_[:4] + fold(2, (0, 1)) + k_[4:8] + fold(3, (0, 1)) + k_[8:] + fold(4, (0, 1)) + fold(5, (0, 1))
    n_ = FW_ * len(seq_[FQ0:])
    weave(seq_[FQ0:], rest[:n_], FW_)
    xstamp(a, "tl", 12)
    for x in rest[n_:]: a(x)
    stamp(a, 2)
    if not VD:
        for i in range(4): a(f"v_mov_b32_dpp v{CSV+i}, v{ACC+8+i} row_newbcast:0 row_mask:0xf bank_mask:0xf")
        fv = [fold(rt, (2,)) for rt in range(6)]
        for h_ in range(2):
            for k_ in range(5):
                for j in range(3): a(fv[3*h_+j][k_])
    a(f"s_setprio {APR[0]}")
    a("s_branch AT_e2")

MN, CSV = 184, 196
def fold(rt, parts):
    o = []
    for p in parts:
        c = ACC + 12 * rt + 4 * p; k = 20 + 4 * p if p < 2 else CSV
        if p < 2 and rt < PKF:
            for i in range(4): o.append(f"v_fma_f32 v{c+i}, -v{MN+2*rt}, v{k+i}, v{c+i}")
            continue
        for hh in range(2):
            o.append(f"v_pk_fma_f32 v[{c+2*hh}:{c+2*hh+1}], v[{MN+2*rt}:{MN+2*rt+1}], v[{k+2*hh}:{k+2*hh+1}], v[{c+2*hh}:{c+2*hh+1}] op_sel_hi:[0,1,1] neg_lo:[1,0,0] neg_hi:[1,0,0]")
    for p in parts:
        c = ACC + 12 * rt + 4 * p
        o.append(f"v_cvt_pk_bf16_f32 v{c}, v{c}, v{c+1}")
        o.append(f"v_cvt_pk_bf16_f32 v{c+1}, v{c+2}, v{c+3}")
        o.append(f"ds_write_b64 v3, v[{c}:{c+1}] offset:{rt*16*QS + (QO, KO, VO)[p]}")
    return o
def rk_reads():
    return [f"ds_read_b32 v16, v{STQ} offset:4"] + [f"ds_read2_b32 v[{4+2*i}:{5+2*i}], v{SA} offset0:{4*i} offset1:{4*i+2}" for i in range(6)]
def at_consts():
    o = ["s_mov_b32 s60, 0x07060503", "s_mov_b32 s61, 0x07060502", "s_mov_b32 s62, 0x07060501", "s_mov_b32 s63, 0x04000c0c", "s_mov_b32 s64, 0x0706000c"]
    for k_, m_ in enumerate((0x11111111, 0x33333333, 0x77777777)): o += [f"s_mov_b32 s{66+2*k_}, {m_:#x}", f"s_mov_b32 s{67+2*k_}, s{66+2*k_}"]
    return o

PN, PG, L16, L4 = 200, 201, 202, 203
SQ, SK, FQ, FK, STQ, STK = 204, 205, 206, 207, 208, 209
PAF, PAS, JH, XLP, VTR, OST = 210, 211, 212, 213, 214, 215
WTR = 216
CRO, OUTA, TOKC, WRA, HS = 224, 225, 226, 227, 228
PFA = 172
SQ5 = (204, 229, 230, 231, 255)
KA, XST, AML, SA, PA, AMH, JB = SK, FQ, FK, STK, PAF, PAS, JH
OLD = 249
HR = 252
OWN = 204
XA, WOK = 250, 251
TBW, TBR, XLA, JR0, PM, OSA, FLA, FPA, KH, CRB, CDA = 0, 1, 12, 13, 20, 22, 23, 100, 101, 44, 45
ESA = 57
def setup_late(a):
    a("S_late:")
    a(f"v_and_b32 v{PN}, 15, v0")
    a(f"v_lshrrev_b32 v{PG}, 4, v0")
    a(f"v_lshlrev_b32 v{L16}, 4, v0")
    a(f"v_lshlrev_b32 v{L4}, 2, v0")
    a("v_lshrrev_b32 v64, 5, v0")
    a(f"v_and_b32 v65, 12, v{PN}")
    a(f"s_lshl_b32 s4, s{TY}, 3")
    a(f"s_sub_u32 s4, {QKV}, s4")
    a(f"s_min_u32 s5, s{WV}, 5")
    a("s_lshl_b32 s6, s5, 4")
    a(f"v_add_u32 v67, s6, v{PN}")
    a(f"v_mul_u32_u24 v68, {QS}, v67")
    a(f"v_mad_u32_u24 v66, v{PG}, 40, s4")
    a("v_add_u32 v71, v68, v66")
    a(f"v_subrev_u32 v{KA}, {8*QS - KO}, v71")
    a(f"v_mul_u32_u24 v72, 5, v{PG}")
    a(f"v_subrev_u32 v72, s{TY}, v72")
    a(f"v_mov_b32 v73, {ZERO}")
    for c in range(5):
        a(f"v_add_u32 v74, {c}, v72")
        a("v_cmp_gt_u32 vcc, 16, v74")
        a(f"v_add_u32 v74, {8*c}, v71")
        a(f"v_cndmask_b32 v{SQ5[c]}, v73, v74, vcc")
    a(f"v_lshlrev_b32 v{STQ}, 3, v67")
    a(f"v_add_u32 v{STQ}, {STAT}, v{STQ}")
    a("v_add_u32 v69, s6, v65")
    a(f"v_lshlrev_b32 v{SA}, 3, v69")
    a(f"v_add_u32 v{SA}, {STAT - 64 + 4}, v{SA}")
    a("v_and_b32 v70, 3, v0")
    a("v_cmp_gt_u32 vcc, 1, v70")
    a(f"v_mov_b32 v73, s{HIM}")
    a(f"v_cndmask_b32 v{AML}, 0, v73, vcc")
    a("v_cmp_gt_u32 vcc, 3, v70")
    a(f"v_cndmask_b32 v{AMH}, 0, v73, vcc")
    a("v_cmp_gt_u32 vcc, 2, v70")
    a(f"v_cndmask_b32 v{AMH}, v{AMH}, -1, vcc")
    a("s_setpc_b64 s[98:99]")
    a("S_late2:")
    a("s_lshl_b32 s7, s5, 12")
    a(f"s_add_u32 s7, s7, {PB + 16}")
    a(f"v_lshl_add_u32 v66, v0, 6, s7")
    a(f"v_lshl_add_u32 v{PA}, v65, 1, v66")
    a(f"s_add_u32 s{JR0}, s6, s{J0}")
    a(f"v_add_u32 v{JB}, s{JR0}, v65")
    a(f"s_mul_i32 s8, s{RB}, 6"); a(f"s_mul_i32 s9, s8, {T_SZ}"); a(f"s_add_u32 s9, s9, {WS_T}")
    a(f"s_mul_i32 s{TBW}, s{WV}, {T_SZ}"); a(f"s_add_u32 s{TBW}, s{TBW}, s9")
    a(f"v_lshlrev_b32 v{XST}, 4, v{PN}")
    a(f"v_lshl_add_u32 v{XST}, v64, 8, v{XST}")
    a(f"v_xor_b32 v{XLP}, 256, v{XST}")
    a(f"v_lshl_add_u32 v{XLP}, v64, 12, v{XLP}")
    a(f"s_cmp_lg_u32 s{TY}, 0")
    a(f"s_cselect_b32 s{PM}, 0x0000ffff, 0")
    a(f"s_cmp_lg_u32 s{TY}, 4")
    a(f"s_cselect_b32 s{PM+1}, s{HIM}, 0")
    a(f"s_cmp_eq_u32 s{WV}, 0"); a("s_cselect_b32 s7, 0xff00ff00, -1"); a(f"s_and_b32 s{PM}, s{PM}, s7"); a(f"s_and_b32 s{PM+1}, s{PM+1}, s7")
    a(f"s_lshl_b32 s7, s{LG}, 11"); a(f"s_add_u32 s{OSA}, s{TBW}, s7")
    a(f"s_sub_u32 s{XLA}, s{OSA}, 2048")
    a(f"s_add_u32 s{FPA}, s9, {T_FL}")
    a(f"s_lshr_b32 s7, s{LG}, 1"); a(f"s_mul_i32 s7, s7, {T_SZ - 768}"); a(f"s_mul_i32 s{ESA}, s{LG}, 384"); a(f"s_add_u32 s7, s7, s{ESA}")
    a(f"s_add_u32 s7, s7, {T_E}"); a(f"s_add_u32 s{ESA}, s7, s9")
    a(f"s_mul_i32 s7, s{WV}, 10"); a(f"s_add_u32 s7, s7, s{LG}"); a("s_lshl_b32 s7, s7, 2"); a(f"s_add_u32 s{FLA}, s{FPA}, s7")
    a(f"s_sub_u32 s{RT}, s{WV}, 2")
    a(f"s_cmp_lt_u32 s{WV}, 6"); a(f"s_cselect_b32 s{KH}, 0, 1"); a(f"s_cselect_b32 s{RT}, s{WV}, s{RT}")
    a(f"s_mul_i32 s{TBR}, s{RT}, {T_SZ}"); a(f"s_add_u32 s{TBR}, s{TBR}, s9")
    a(f"s_add_u32 s8, s8, s{RT}")
    a(f"s_mul_i32 s{CRB}, s{RB}, 2560"); a(f"s_lshl_b32 s7, s{LG}, 8"); a(f"s_add_u32 s{CRB}, s{CRB}, s7"); a(f"s_add_u32 s{CRB}, s{CRB}, {WS_ROWA}")
    a(f"s_lshl_b32 s{CDA}, s{RB}, 6"); a(f"s_add_u32 s{CDA}, s{CDA}, {WS_EK}")
    a("s_setpc_b64 s[98:99]")
    a("S_late3:")
    a("v_bfe_u32 v68, v0, 2, 2")
    a("v_and_b32 v69, 3, v0")
    a(f"v_lshl_add_u32 v70, v{PG}, 3, v68")
    a(f"s_lshl_b32 s7, s{WV}, 4"); a("s_sub_u32 s7, s7, 16")
    a("v_add_u32 v71, s7, v70")
    a("v_and_b32 v72, 15, v71")
    a("v_max_i32 v71, v71, v72")
    a(f"v_mul_u32_u24 v71, {QS}, v71")
    a("v_lshl_add_u32 v71, v69, 3, v71")
    a(f"v_add_u32 v{VTR}, {QKV + VO}, v71")
    a(f"v_and_b32 v72, 1, v{PG}")
    a(f"s_cmp_eq_u32 s{WV}, 0"); a("s_cselect_b32 s7, 8, 0")
    a(f"v_cmp_gt_u32 vcc, s7, v{PN}")
    a(f"v_cndmask_b32 v{OLD}, v{L16}, 2.0, vcc")
    a("v_lshrrev_b32 v71, 1, v68")
    a("v_lshl_or_b32 v71, v72, 1, v71")
    a(f"v_lshl_add_u32 v70, v{PG}, 2, v68")
    a("v_lshlrev_b32 v70, 7, v70")
    a("v_lshl_add_u32 v70, v69, 3, v70")
    a(f"s_mul_i32 s7, s{KH}, 40960"); a(f"s_add_u32 s7, s7, {WO_L}")
    a("v_add_u32 v70, s7, v70")
    a(f"s_mul_i32 s7, s{KH}, 36864"); a("s_sub_u32 s7, 40960, s7")
    for t in range(4):
        a(f"v_xor_b32 v73, {t}, v71")
        a(f"v_lshl_add_u32 v{WTR+t}, v73, 5, v70")
        a(f"v_add_u32 v{WTR+4+t}, s7, v{WTR+t}")
    a("s_setpc_b64 s[98:99]")
    a("S_late4:")
    a(f"s_lshl_b32 s7, s{RT}, 4")
    a(f"v_add_u32 v73, s7, v{PN}")
    a("v_cmp_gt_u32 vcc, 10, v73")
    a(f"v_add_u32 v73, s{J0}, v73")
    a(f"v_lshl_add_u32 v73, v73, 1, s{SP}")
    a("v_mul_u32_u24 v74, 1280, v73")
    a(f"s_lshl_b32 s7, s{LG}, 7")
    a(f"v_lshl_add_u32 v75, v{PG}, 3, s7")
    a("v_add_u32 v74, v74, v75")
    a(f"v_cndmask_b32 v{XOFF}, v74, 2.0, vcc")
    a(f"v_cndmask_b32 v{XOFF+1}, v73, -1, vcc")
    a(f"v_add_u32 v{WRA}, {WRL}, v75")
    a(f"v_mul_u32_u24 v{CRO}, {RSTR}, v{PG}")
    a(f"v_lshl_add_u32 v{CRO}, v{PN}, 4, v{CRO}")
    a(f"s_mov_b32 s7, {SCR}")
    a(f"v_lshl_add_u32 v{HS}, v{PG}, 5, s7")
    a(f"v_lshl_add_u32 v{HR}, v69, 5, s7")
    a(f"v_lshl_add_u32 v{HR}, v68, 3, v{HR}")
    a(f"v_mul_u32_u24 v{OUTA}, 24, v72")
    a(f"v_add_u32 v{OUTA}, v{OUTA}, v{XOFF}")
    a(f"v_lshl_add_u32 v{TOKC}, s8, 4, v{PN}")
    a(f"s_cmp_eq_u32 s{KH}, 1"); a("s_cselect_b64 vcc, -1, 0")
    if XL_:
        a(f"v_lshrrev_b32 v73, 1, v{PN}"); a(f"v_lshrrev_b32 v74, 1, v{PG}"); a("v_xor_b32 v73, v73, v74"); a("v_lshlrev_b32 v73, 4, v73")
        a("v_lshl_add_u32 v73, v72, 3, v73"); a(f"v_lshl_add_u32 v73, v{PN}, 7, v73"); a(f"v_lshl_add_u32 v{XA}, s{RT}, 11, v73")
    else: a(f"v_cndmask_b32 v{XA}, v{OUTA}, 2.0, vcc")
    a(f"v_mov_b32 v{WOK}, {WOKA}")
    bprep(a)
    a(f"s_lshl_b32 s7, s{WV}, 12"); a(f"s_add_u32 s7, s7, {PB}")
    a(f"v_lshl_add_u32 v73, v{PN}, 6, s7")
    a(f"v_lshl_add_u32 v73, v{PG}, 4, v73")
    if VM: a(f"v_add_u32 v74, s{TY}, v68")
    else: a(f"v_add_u32 v74, s{TY}, v{PG}")
    for t in range(4):
        for hi in range(2):
            a(f"s_add_u32 s69, s{TY}, {4*t+3*hi}")
            a("s_mul_i32 s69, s69, 52"); a("s_lshr_b32 s69, s69, 8")
            a(f"v_lshl_add_u32 v{PFA+2*t+hi}, s69, 10, v73")
            if hi:
                a("s_mul_i32 s69, s69, 5"); a(f"s_sub_u32 s69, s69, {4*t}")
                a(f"v_cmp_le_i32 s[{4+2*t}:{5+2*t}], s69, v74")
    a("s_setpc_b64 s[98:99]")

OBC, OBE, OBS = 14, 15, 16
FMK, FTA = 18, 17
def bprep(a):
    a(f"s_add_u32 s7, s{TY}, 5"); a(f"s_cmp_lt_u32 s{LG}, 5"); a(f"s_cselect_b32 s7, s7, s{TY}")
    a(f"s_lshl_b32 s7, s7, 11"); a(f"s_add_u32 s{OBS}, s7, s{TBR}")
    a(f"s_lshl_b32 s7, s{LG}, 11"); a(f"s_add_u32 s{OBC}, s7, s{TBR}"); a(f"s_add_u32 s{OBE}, s{TBR}, 20480")
    a(f"s_cmp_eq_u32 s{KH}, 1"); a(f"s_cselect_b32 s{OBC}, s{OBS}, s{OBC}"); a(f"s_cselect_b32 s{FMK}, 0x3e0, 62")
    a(f"s_lshl_b32 s7, s{KH}, 10"); a(f"s_add_u32 s{OBS}, s{OBS}, s7")
    a(f"s_cmp_lt_u32 s{WV}, 4"); a(f"s_cselect_b32 s{FMK}, 0x3fe, s{FMK}")
    a(f"s_lshl_b32 s{FMK}, s{FMK}, s{LG}"); a(f"s_lshr_b32 s7, s{FMK}, 10"); a(f"s_or_b32 s{FMK}, s{FMK}, s7"); a(f"s_and_b32 s{FMK}, s{FMK}, 0x3ff"); a(f"s_mov_b32 s{FMK+1}, 0")
    a(f"s_mul_i32 s{FTA}, s{RT}, 40"); a(f"s_add_u32 s{FTA}, s{FTA}, s{FPA}")
def fpoll(a):
    a(f"s_mov_b64 exec, s[{FMK}:{FMK+1}]")
    a(f"buffer_load_dword v18, v{L4}, s[24:27], s{FTA} offen sc1")
    a("s_mov_b64 exec, -1")
ORING = (168, 172, 176, 180, 212, 12, 164, 232, 236)
of = lambda ks: OWN + 4 * ks if ks < 2 else ORING[(ks - 2) % 9]
def old(a, ks):
    if ks == 10: a(f"s_mov_b32 s{OBC}, s{OBS}")
    elif ks % 2 == 0:
        a(f"s_add_u32 s{OBC}, s{OBC}, 2048"); a(f"s_cmp_eq_u32 s{OBC}, s{OBE}"); a(f"s_cselect_b32 s{OBC}, s{TBR}, s{OBC}")
    a(f"buffer_load_dwordx4 v[{of(ks)}:{of(ks)+3}], v{OLD}, s[24:27], s{OBC} offen offset:{(ks%2)*1024}{OSC}")

def attention(a):
    a("AT_start:")
    a(f"s_setprio {APR[1]}")
    RK, Q, K, D, G = 4, 20, 30, 60, 80
    VF, PF, OA = 100, 116, 20
    for x in rk_reads() + at_consts(): a(x)
    a("v_mov_b32 v3, 0")
    a("AT_e2:")
    a("s_waitcnt lgkmcnt(0)")
    a("s_barrier")
    stamp(a, 3)
    def prep():
        if XL_: return
        for tp in range(2): a(f"buffer_load_dwordx4 v[{XR+4*tp}:{XR+4*tp+3}], v{XA}, s[28:31], 0 offen offset:{64*tp}")
    def wok():
        a("v_mov_b32 v19, 1")
        a("s_mov_b64 exec, 1")
        a(f"ds_add_u32 v{WOK}, v19")
        a("s_mov_b64 exec, -1")
    def wlate():
        if WREG:
            for q in ("3", "4"):
                if LPOS[int(q) + 2] == 10: a(f"s_call_b64 s[98:99], S_late{q}")
            for i in range(12):
                a(f"s_waitcnt vmcnt({11-i})")
                a(f"ds_write_b128 v99, v[{WRG+4*i}:{WRG+4*i+3}] offset:{4096*(i//2) + 2048*(1-i%2)}")
            return
        a(f"s_lshl_b32 s65, s{WV}, 10"); a(f"s_add_u32 s65, s65, {WO_L - 4096}")
        a(f"v_subrev_u32 v98, {16*1280}, v99")
        a(f"s_mul_i32 s66, s{LG}, {64*1280}")
        for i in range(6):
            a(f"s_add_u32 m0, s65, {4096*i}")
            a("s_nop 0")
            a("buffer_load_dwordx4 v99, s[36:39], s66 offen lds")
            a(f"s_add_u32 m0, s65, {4096*i - 2048}")
            a("s_nop 0")
            a("buffer_load_dwordx4 v98, s[36:39], s66 offen lds")
            if i < 5: a(f"s_add_u32 s66, s66, {32*1280}")
            if i in (1, 3):
                a(f"s_cmp_eq_u32 s66, {WO_BYTES}"); a("s_cselect_b32 s66, 0, s66")
    if WREG:
        a("s_branch AT_qk")
        a("AT_67:")
    else:
        a(f"s_cmp_lt_u32 s{WV}, 6")
        a("s_cbranch_scc1 AT_qk")
    if PREW:
        a(f"s_sub_u32 s65, s{TAG}, 1"); a("v_mov_b32 v10, s65")
        a(f"s_sub_u32 s66, s{CRB}, {WS_ROWA - WS_ROWB}")
        a(f"s_cmp_eq_u32 s{WV}, 6"); a(f"s_cselect_b32 s65, s{CRB}, s66"); a("s_cselect_b64 exec, -1, 0xffff")
        a(f"buffer_store_dwordx3 v[8:10], v{CRO}, s[24:27], s65 offen sc1")
        a("s_mov_b64 exec, -1")
    if not WLO:
        wlate()
        if WREG: wok()
        prep()
    if KB and PADS & 4:
        a("s_mov_b64 exec, 0")
        a(f"s_cmp_eq_u32 s{WV}, 6"); a("s_cbranch_scc1 HC0_0")
        a("s_branch HC1_0")
        a("HC_ret:")
        a("s_mov_b64 exec, -1")
        a.hops.append(("HC", "B_fast", "B_fend", 2))
    if HSP and PADS & 2:
        a("s_mov_b64 exec, 0")
        a(f"s_cmp_eq_u32 s{WV}, 6"); a("s_cbranch_scc1 HB0_0")
        a("s_branch HB1_0")
        a("HB_ret:")
        a("s_mov_b64 exec, -1")
        a.hops.append(("HB", "B_start", "L_fin", 2))
    if WLO:
        if WLW:
            a("AT_wl:")
            a(f"ds_read_b32 v19, v{WOK} offset:16")
            a("s_waitcnt lgkmcnt(0)")
            a(f"v_cmp_gt_u32 vcc, {WLW}, v19")
            a("s_cbranch_vccz AT_wld")
            spin(a, "AT_wl", 1)
            a("AT_wld:")
        wlate()
        prep()
    a("s_mov_b32 s62, 1")
    a("s_waitcnt vmcnt(0)")
    if not WREG: wok()
    a("s_branch B_start")
    a("AT_qk:")
    for d in range(5):
        a(f"ds_read_b64 v[{Q+2*d}:{Q+2*d+1}], v{SQ5[d]}")
        for c in range(3): a(f"ds_read_b64 v[{K+10*c+2*d}:{K+10*c+2*d+1}], v{KA} offset:{4*c*QS+8*d}")
    def merge(b):
        for i in range(1, 4): a(f"v_cndmask_b32 v{b+8+i}, v{b+8+i}, v{b+i}, s[{64+2*i}:{65+2*i}]")
    if XE == 1: prep()
    merge(RK)
    a(f"v_mov_b32 v79, s{TAG}"); a(f"v_mov_b32 v{G+3}, s{TAG}"); a(f"v_mov_b32 v{G+7}, s{TAG}")
    for i in (0, 1, 2, 3): a(f"v_mov_b64 v[{G+8+2*i}:{G+9+2*i}], 0")
    a(f"v_mul_f32 v16, {f32(20 ** -0.5 * LOG2E)}, v16")
    SC = 148
    for i in range(8): a(f"v_mul_f32 v{SC+i}, v16, v{RK+4+i}")
    if VE:
        a(f"s_cmp_ge_u32 s{WV}, 4"); a("s_cbranch_scc1 AT_ve")
        for i in range(4): a(f"v_mov_b32_dpp v{CSV+i}, v{ACC+8+i} row_newbcast:0 row_mask:0xf bank_mask:0xf")
        for k_ in range(4):
            for rt in range(6): a(fold(rt, (2,))[k_])
        a("AT_ve:")
    for d in range(5):
        a(f"s_waitcnt lgkmcnt({min(15, 16-4*d)})")
        for c in range(3):
            a(f"v_mfma_f32_4x4x4_16b_bf16 v[{D+4*c}:{D+4*c+3}], v[{K+10*c+2*d}:{K+10*c+2*d+1}], v[{Q+2*d}:{Q+2*d+1}], {'0' if d == 0 else 'v[%d:%d]' % (D+4*c, D+4*c+3)}")
    a(f"s_cmp_lt_i32 s{JR0}, 8")
    a("s_cbranch_scc1 AT_mask")
    a("AT_nomask:")
    a.cold.append("AT_mask:")
    a.cold.append(f"    v_mov_b32 v17, {f32(-1e30)}")
    for kk in range(12):
        a.cold.append(f"    v_cmp_le_i32 vcc, {8-kk}, v{JB}")
        a.cold.append(f"    v_cndmask_b32 v{D+kk}, v17, v{D+kk}, vcc")
    a.cold.append("    s_branch AT_nomask")
    xstamp(a, "at", 10)
    merge(D)
    L = D + 4
    for i in range(0, 8, 2): a(f"v_pk_mul_f32 v[{L+i}:{L+i+1}], v[{L+i}:{L+i+1}], v[{SC+i}:{SC+i+1}]")
    for h in range(2):
        for i in range(3): a(f"v_perm_b32 v{G+4*h+i}, v{L+4*h+i}, v{L+4*h+3}, s{60+i}")
    a(f"s_mov_b64 exec, s[{PM}:{PM+1}]")
    xstamp(a, "at", 11)
    st2(a, [f"buffer_store_dwordx4 v[{G+4*h}:{G+4*h+3}], v{XLP}, s[24:27], s{XLA} offen offset:{512*h}" for h in range(2)])
    xstamp(a, "at", 12)
    U, VH = 156, 36
    sh = [f"s_cmp_ge_u32 s{WV}, 4", "s_cbranch_scc1 AT_vw"]
    if VLATE:
        A1 = [20 + 4 * rt for rt in range(6)]; A0 = [44, 48, 52, 56, 112, 116]
        rdv = lambda A, r0, rn: [f"ds_read_b128 v[{A[rt]}:{A[rt]+3}], v{rn if rt else r0} offset:{rt*2048}" for rt in range(6)]
        mv = lambda A, w, rt: f"v_mfma_f32_16x16x32_bf16 v[{ACC+12*rt+8}:{ACC+12*rt+11}], v[{w}:{w+3}], v[{A[rt]}:{A[rt]+3}], v[{ACC+12*rt+8}:{ACC+12*rt+11}]"
        sh += rdv(A1, 2, 1)
        if VLATE == 2:
            sh += ["v_cmp_eq_u32 vcc, v1, v2", "v_xor_b32 v1, 64, v1", "v_cndmask_b32 v2, v2, v1, vcc"] + rdv(A0, 2, 1)
        n_ = 6 * VLATE
        for i in range(n_): sh += [f"s_waitcnt lgkmcnt({n_-1-i})", mv(A1, 96, i) if i < 6 else mv(A0, 180, i - 6)]
    sh += [f"v_mov_b32_dpp v{CSV+i}, v{ACC+8+i} row_newbcast:0 row_mask:0xf bank_mask:0xf" for i in range(4)]
    fv = [fold(rt, (2,)) for rt in range(6)]
    for h_ in range(2):
        for k_ in range(5): sh += [fv[3*h_+j][k_] for j in range(3)]
    if VE: sh = [x for x in sh if not x.startswith("v_")]
    sh += ["v_mov_b32 v19, 1", "s_mov_b64 exec, 1", f"ds_add_u32 v{WOK}, v19 offset:{ECN - WOKA}", "s_mov_b64 exec, -1"]
    sh += ["AT_vw:"]
    vrd = []
    for t in range(4):
        vrd.append(f"ds_read_b64_tr_b16 v[{VF+4*t}:{VF+4*t+1}], v{VTR} offset:{32*t}")
        vrd.append(f"ds_read_b64_tr_b16 v[{VF+4*t+2}:{VF+4*t+3}], v{VTR} offset:{32*t+4*QS}")
    if not VD: sh = list(vrd)
    assert not (VD and VM)
    XP = {0: 0, 2: 1000}.get(XPM)
    if XP is None:
        XP = 2 + XPM
        sh = [sh[0], "s_cbranch_scc1 AT_v1"] + sh[2:XP] + ["AT_v1:"] + ["s_cbranch_scc1 AT_vw"] + sh[XP:]
        XP += 1
    sh.append(f"v_lshl_add_u32 v17, v{PG}, 3, v{WOK}")
    for tp in range(2): sh.append(f"ds_read2_b64 v[{U+4*tp}:{U+4*tp+3}], v17 offset0:{(UL - WOKA + 64*tp)//8} offset1:{(UL - WOKA + 64*tp + 32)//8}")
    sh += [f"v_and_b32 v{U+8}, 2, v{PG}", f"v_lshl_add_u32 v{U+8}, v{PN}, 2, v{U+8}", f"s_lshl_b32 s65, s{WV}, 6", f"s_add_u32 s65, s65, s{ESA}"]
    if VM:
        sh.append("s_waitcnt lgkmcnt(2)")
        for t in range(4):
            for r in range(4): sh.append(f"v_cndmask_b32 v{VH+4*t+r}, 0, v{VF+4*t+r}, s[{4+2*t}:{5+2*t}]")
            for r in range(4): sh.append(f"v_cndmask_b32 v{VF+4*t+r}, v{VF+4*t+r}, 0, s[{4+2*t}:{5+2*t}]")
    if XP:
        a("s_mov_b64 exec, -1")
        for x in sh[:XP]: a(x)
        a(f"s_mov_b64 exec, s[{PM}:{PM+1}]")
    if XP < len(sh):
        for h in range(2): a(f"buffer_load_dwordx4 v[{G+8+4*h}:{G+11+4*h}], v{XST}, s[24:27], s{OSA} offen offset:{512*h} sc1")
        a("s_mov_b64 exec, -1")
        for x in sh[XP:]: a(x)
        a(f"s_mov_b64 exec, s[{PM}:{PM+1}]")
        a("s_branch AT_pw")
    a("AT_poll:")
    for h in range(2): a(f"buffer_load_dwordx4 v[{G+8+4*h}:{G+11+4*h}], v{XST}, s[24:27], s{OSA} offen offset:{512*h} sc1")
    a("AT_pw:")
    stamp(a, 4)
    a("s_waitcnt vmcnt(0)")
    a(f"v_cmp_ne_u32 vcc, s{TAG}, v{G+11}")
    a(f"v_cmp_ne_u32 s[58:59], s{TAG}, v{G+15}")
    a("s_or_b64 vcc, vcc, s[58:59]")
    a("s_cbranch_vccz AT_got")
    spin(a, "AT_poll", XSL)
    a("AT_got:")
    if WLW:
        a("s_mov_b64 exec, 1")
        a("v_mov_b32 v19, 1")
        a(f"ds_add_u32 v{WOK}, v19 offset:16")
    if PO == "pv":
        a("s_mov_b64 exec, 0xffff")
        a(f"v_lshlrev_b32 v17, 3, v{L16}")
        a(f"buffer_load_dword v183, v17, s[24:27], s{OSA} offen sc1")
    a("s_mov_b64 exec, -1")
    stamp(a, 5)
    if len(CST) < 4: cstamp(a, 9)
    if VD: a(f"ds_read_b32 v17, v{WOK} offset:{ECN - WOKA}")
    a(f"s_cmp_lt_u32 s{WV}, 4")
    a("s_cbranch_scc1 AT_w0")
    wok()
    a("AT_w0:")
    if not XLATE and XE == 0: prep()
    for h in range(2):
        g_ = G + 8 + 4 * h
        a(f"v_perm_b32 v{g_+3}, v{g_}, v{g_+1}, s63")
    for h in range(2):
        g_ = G + 8 + 4 * h
        a(f"v_perm_b32 v{g_+3}, v{g_+3}, v{g_+2}, s64")
    for i in (0, 4, 2, 6): a(f"v_pk_add_f32 v[{L+i}:{L+i+1}], v[{L+i}:{L+i+1}], v[{G+8+i}:{G+8+i+1}]")
    a(f"v_max3_f32 v18, v{L}, v{L+1}, v{L+2}")
    a(f"v_max3_f32 v19, v{L+3}, v{L+4}, v{L+5}")
    a(f"v_max3_f32 v18, v18, v{L+6}, v{L+7}")
    a("v_max_f32 v18, v18, v19")
    for i in range(0, 8, 2): a(f"v_pk_add_f32 v[{L+i}:{L+i+1}], v[{L+i}:{L+i+1}], v[{18}:{18+1}] op_sel_hi:[1,0] neg_lo:[0,1] neg_hi:[0,1]")
    if VD:
        a("AT_vc:")
        a("s_waitcnt lgkmcnt(0)")
        a("v_cmp_ne_u32 vcc, 4, v17")
        a("s_cbranch_vccnz AT_vs")
        a("AT_vg:")
        a.cold += ["AT_vs:", f"    ds_read_b32 v17, v{WOK} offset:{ECN - WOKA}", f"    s_sub_u32 s{SPIN}, s{SPIN}, 1", "    s_cbranch_scc0 AT_vc", f"    s_mov_b32 s{SPIN}, 0", "    s_branch AT_vg"]
        for x in vrd: a(x)
    for i in range(8): a(f"v_exp_f32 v{L+i}, v{L+i}")
    for i in range(2): a(f"v_pk_add_f32 v[{20+2*i}:{20+2*i+1}], v[{L+4*i}:{L+4*i+1}], v[{L+4*i+2}:{L+4*i+2+1}]")
    a("v_pk_add_f32 v[20:21], v[20:21], v[22:23]")
    a("v_add_f32 v20, v20, v21")
    a("v_rcp_f32 v20, v20")
    for i in range(0, 8, 2): a(f"v_pk_mul_f32 v[{L+i}:{L+i+1}], v[{L+i}:{L+i+1}], v[{RK+4+i}:{RK+4+i+1}]")
    for i in range(0, 8, 2): a(f"v_pk_mul_f32 v[{L+i}:{L+i+1}], v[{L+i}:{L+i+1}], v[{20}:{20+1}] op_sel_hi:[1,0]")
    for i in range(4): a(f"v_cvt_pk_bf16_f32 v{24+i}, v{L+2*i}, v{L+2*i+1}")
    a(f"ds_write_b64 v{PA}, v[24:25] offset:8")
    a(f"v_and_b32 v28, v26, v{AML}"); a(f"v_and_b32 v29, v27, v{AMH}")
    a(f"ds_write_b64 v{PA}, v[28:29]")
    a("v_xor_b32 v26, v26, v28"); a("v_xor_b32 v27, v27, v29")
    a(f"ds_write_b64 v{PA}, v[26:27] offset:16")
    stamp(a, 6)
    for t, hi in ([(t, hi) for hi in range(2) for t in range(4)] if VM else [(t, hi) for t in range(4) for hi in range(2)]):
        a(f"ds_read_b128 v[{PF+8*t+4*hi}:{PF+8*t+4*hi+3}], v{PFA+2*t+hi}")
    a(f"s_cmp_lt_u32 s{WV}, 4")
    a("s_cbranch_scc1 AT_pv")
    a(f"s_lshl_b32 s58, s{WV}, 2"); a(f"s_add_u32 s58, s58, {MODEW + 8 - 16}"); a("v_mov_b32 v18, s58"); a("v_mov_b32 v19, 1")
    a("ds_write_b32 v18, v19")
    a("AT_pv:")
    if VM:
        OA = 80
        for hi in range(2):
            for t in range(4):
                a(f"s_waitcnt lgkmcnt({7-4*hi-t})")
                v_ = (VF, VH)[hi] + 4 * t
                a(f"v_mfma_f32_16x16x32_bf16 v[{OA+4*t}:{OA+4*t+3}], v[{v_}:{v_+3}], v[{PF+8*t+4*hi}:{PF+8*t+4*hi+3}], {'v[%d:%d]' % (OA+4*t, OA+4*t+3) if hi else '0'}")
        for t in range(4):
            a(f"v_cvt_pk_bf16_f32 v{OWN+2*t}, v{OA+4*t}, v{OA+4*t+1}")
            a(f"v_cvt_pk_bf16_f32 v{OWN+2*t+1}, v{OA+4*t+2}, v{OA+4*t+3}")
    else:
        for t in range(4):
            a(f"s_waitcnt lgkmcnt({6-2*t})")
            for hi in range(2):
                a(f"v_mfma_f32_16x16x32_bf16 v[{OA+8*t+4*hi}:{OA+8*t+4*hi+3}], v[{VF+4*t}:{VF+4*t+3}], v[{PF+8*t+4*hi}:{PF+8*t+4*hi+3}], 0")
        for t in range(4):
            for r in range(4):
                a(f"v_cndmask_b32 v{OA+8*t+r}, v{OA+8*t+r}, v{OA+8*t+4+r}, s[{4+2*t}:{5+2*t}]")
            o = OWN + 2 * t
            a(f"v_cvt_pk_bf16_f32 v{o}, v{OA+8*t}, v{OA+8*t+1}")
            a(f"v_cvt_pk_bf16_f32 v{o+1}, v{OA+8*t+2}, v{OA+8*t+3}")
    xstamp(a, "pv", 10)
    st2(a, [f"buffer_store_dwordx4 v[{OWN+4*tp}:{OWN+4*tp+3}], v{OLD}, s[24:27], s{OSA} offen offset:{1024*tp}" for tp in range(2)])
    fpoll(a)
    if XLATE: prep()
    for i in range(8):
        a(f"v_dot2_f32_bf16 v20, v{OWN+i}, v{U+i}, {'0' if i == 0 else 'v20'}")
        a(f"v_dot2_f32_bf16 v21, v{OWN+i}, v{OWN+i}, {'0' if i == 0 else 'v21'}")
    a("v_permlane32_swap_b32 v20, v21")
    a("v_add_f32 v20, v20, v21")
    a("v_mov_b32 v21, v20")
    a("v_permlane16_swap_b32 v20, v21")
    a("s_mov_b32 exec_lo, 0xffff"); a("s_mov_b32 exec_hi, 0xffff")
    a("v_add_f32 v20, v20, v21")
    st2(a, f"buffer_store_short_d16_hi v20, v{U+8}, s[24:27], s65 offen")
    a("s_mov_b64 exec, -1")
    xstamp(a, "pv", 11)
    if not NOACK: a(f"s_waitcnt vmcnt({(3 if XLATE else 1) + FW2})")
    a("s_mov_b64 exec, 1")
    st2(a, f"buffer_store_dword v79, v{L4}, s[24:27], s{FLA} offen")
    a("s_mov_b64 exec, -1")
    stamp(a, 7)
    if WB2 == 2 and not hasattr(a, "wb2"):
        a.wb2 = 1
        a(f"s_cmp_lg_u32 s{WV}, 0"); a("s_cbranch_scc1 B_nw2"); a("s_lshr_b32 s64, s2, 3"); a("s_cmp_lg_u32 s64, 19"); a("s_cbranch_scc1 B_nw2")
        a("buffer_wbl2 sc1"); a("s_waitcnt vmcnt(3)")
        a("B_nw2:")
    if FW2: a(f"s_waitcnt vmcnt({4 if XLATE else 2})")
    a(f"v_cmp_ne_u32 vcc, s{TAG}, v18")
    a(f"s_and_b32 s62, vcc_lo, s{FMK}")
    a("s_cbranch_scc1 B_st0")
    stamp(a, 8)
    for ks in range(2, 2 + UP0): old(a, ks)
    if XLATE:
        a(f"s_waitcnt vmcnt({UP0 + 2})")
        a("s_branch B_start")
    a("B_st0:")
    if XLATE: a("s_waitcnt vmcnt(2)")

def sortkey(a, dst, src):
    a(f"v_ashrrev_i32 v{dst}, 31, v{src}")
    a(f"v_or_b32 v{dst}, 0x80000000, v{dst}")
    a(f"v_xor_b32 v{dst}, v{dst}, v{src}")
    a(f"v_and_b32 v{dst}, 0xfffff000, v{dst}")

def phase_b(a):
    a("B_start:")
    WF, BA = 20, 184
    DEP = 9
    def rd(ks):
        b = WF + 16 * (ks % DEP)
        return [f"ds_read_b64_tr_b16 v[{b+4*t+2*h}:{b+4*t+2*h+1}], v{WTR+(0 if ks < 10 else 4)+t} offset:{(ks%10)*4096+h*2048}" for t in range(4) for h in range(2)]
    a(f"ds_read_b32 v19, v{WOK}")
    for t in range(2): a(f"ds_read2_b64 v[{WR+4*t}:{WR+4*t+3}], v{WRA} offset0:{8*t} offset1:{8*t+4}")
    a(f"ds_read_b32 v{WALL}, v{WOK} offset:{WRL + 1280 - WOKA}")
    if XL_:
        a(f"ds_read_b64 v[{XR}:{XR+1}], v{XA}")
        for t in range(1, 4):
            a(f"v_xor_b32 v{3+t}, {32*t}, v{XA}"); a(f"ds_read_b64 v[{XR+2*t}:{XR+2*t+1}], v{3+t}")
    else:
        for tp in range(2):
            a(f"v_permlane16_swap_b32 v{XR+4*tp}, v{XR+4*tp+2}"); a(f"v_permlane16_swap_b32 v{XR+4*tp+1}, v{XR+4*tp+3}")
        unpack(a, BA, XR, 8)
    a(f"v_cmp_gt_u32 vcc, 2048, v{XOFF+1}")
    a("s_mov_b64 s[4:5], vcc")
    a("s_branch B_wc")
    a("B_ww:")
    a(f"ds_read_b32 v19, v{WOK}")
    a("B_wc:")
    a("s_waitcnt lgkmcnt(0)")
    a("v_cmp_ne_u32 vcc, 4, v19")
    a("s_cbranch_vccz B_wd")
    spin(a, "B_ww", WSL)
    a("B_wd:")
    if SM:
        a("s_mov_b32 exec_lo, 0x00010001"); a("s_mov_b32 exec_hi, 0x00010001")
        for i in range(8): a(f"v_mov_b32 v{WR+i}, 0x3f803f80")
        a("s_mov_b64 exec, -1")
    a(f"s_setprio {BPR[1]}")
    a(f"s_cmp_ge_u32 s{WV}, 6")
    a("s_cbranch_scc1 B_r2")
    for ks in range(PRE):
        if ks == 2: a("B_r2:")
        for x in rd(ks): a(x)
        if ks == APL:
            a("s_cmp_eq_u32 s62, 0")
            a("s_cbranch_scc1 B_nap")
            fpoll(a)
            a("B_nap:")
    XF, H, HP, LP = 20, 36, 52, 60
    ld = lambda ks: old(a, ks)
    class Pipe:
        def __init__(p, last):
            p.last = last; p.q = [(k, x) for k in range(PRE, last + 1) for x in rd(k)]; p.issued = []; p.done = -1
        def read(p, n, t=0):
            while n and p.q:
                k, x = p.q[0]
                tile = (8 - sum(1 for kk, _ in p.q if kk == k)) // 2
                if k - DEP > p.done + 1 or (k - DEP == p.done + 1 and tile >= t): break
                a(x); p.issued.append(k); p.q.pop(0); n -= 1
        def step(p, ks, vm, extra=None, fill=(), per=(1, 1, 1, 2), mf=True):
            assert not any(k == ks for k, _ in p.q), ks
            pos = [i for i, k in enumerate(p.issued) if k == ks]
            n = len(p.issued) - 1 - pos[-1] if pos else len(p.issued)
            p.done = ks - 1
            w = ([f"vmcnt({vm})"] if vm is not None else []) + [f"lgkmcnt({0 if fill == 'all' else min(n, 15)})"]
            a("s_waitcnt " + " ".join(w))
            b = WF + 16 * (ks % DEP)
            fill = [] if fill == 'all' else list(fill)
            for t in range(4):
                a(f"v_mfma_f32_16x16x32_bf16 v[{BA+4*t}:{BA+4*t+3}], v[{b+4*t}:{b+4*t+3}], v[{of(ks)}:{of(ks)+3}], v[{BA+4*t}:{BA+4*t+3}]")
                if t == 3 and extra is not None: ld(extra)
                p.read(per[t], t)
                for x in fill[t:t+1]: a(x)
            p.done = ks
    e1 = [f"ds_read_b32 v10, v{WOK} offset:{EKW - WOKA}"]
    p = Pipe(19)
    a(f"s_cmp_ge_u32 s{WV}, 6")
    a("s_cbranch_scc1 B_no")
    if XL_: unpack(a, BA, XR, 8)
    p.step(0, None, per=(0, 0, 0, 0)); p.step(1, None, per=(0, 0, 0, 0))
    a("s_branch B_n2")
    a("B_rds:")
    p.read(8 * (RE + 1 - PRE))
    a("s_setpc_b64 s[98:99]")
    a("B_no:")
    if XL_:
        for i in range(8): a(f"v_mov_b64 v[{BA+2*i}:{BA+2*i+1}], 0")
    a("s_call_b64 s[98:99], B_rds")
    E_ = 52
    EA = (58, 59, 60, 12, 13)
    a("v_mul_u32_u24 v4, 12, v0")
    for i in range(5): a(f"s_add_u32 s{EA[i]}, s{FPA}, {T_E - T_FL + i * T_SZ}")
    a("v_and_b32 v5, 31, v0"); a("v_mul_u32_u24 v5, 3, v5")
    a(f"s_mul_i32 s64, s{RB}, 96"); a(f"s_sub_u32 s65, {1024 - 10}, s{J0}")
    a("v_mov_b32 v6, 0xfffff000")
    for j in range(3):
        a(f"v_add_u32 v7, {j - 10}, v5")
        a("v_cmp_gt_u32 vcc, s65, v7")
        a(f"v_add3_u32 v7, v5, s64, {j}")
        a(f"v_cndmask_b32 v{8+j}, 0, v7, vcc")
        a(f"v_cndmask_b32 v{OWN+j}, 0, v6, vcc")
    a(f"v_mov_b32 v7, s{TAG}")
    a(f"v_lshlrev_b32 v11, 11, v{PN}")
    a(f"s_setprio {BPR[2]}")
    a("B_n2:")
    xstamp(a, "e", 6)
    a("s_cmp_eq_u32 s62, 0")
    a("s_cbranch_scc1 B_run")
    a(f"s_mov_b64 exec, s[{FMK}:{FMK+1}]")
    if APL >= 0: a("s_branch B_pw")
    a("B_poll:")
    a(f"buffer_load_dword v18, v{L4}, s[24:27], s{FTA} offen sc1")
    a("B_pw:")
    a("s_waitcnt vmcnt(0)")
    a(f"v_cmp_ne_u32 vcc, s{TAG}, v18")
    a("s_cbranch_vccz B_go")
    spin(a, "B_poll", BSL)
    a("B_go:")
    a("s_mov_b64 exec, -1")
    if WB2 in (1, 3):
        a(f"s_cmp_lg_u32 s{WV}, {7 if WB2 == 1 else 2}"); a("s_cbranch_scc1 B_nw2"); a("s_lshr_b32 s64, s2, 3"); a("s_cmp_lg_u32 s64, 19"); a("s_cbranch_scc1 B_nw2")
        a("buffer_wbl2 sc1")
        a("B_nw2:")
    stamp(a, 8)
    for ks in range(2, 2 + UP0): ld(ks)
    a("B_run:")
    a(f"s_cmp_ge_u32 s{WV}, 6")
    a("s_cbranch_scc1 B_half")
    a("s_call_b64 s[98:99], B_rds")
    a(f"s_cmp_ge_u32 s{WV}, 4")
    a("s_cbranch_scc1 B_half")
    a(f"s_setprio {BPR[0]}")
    for ks in range(2 + UP0, 2 + UPF): ld(ks)
    base = list(p.issued); baseq = [x for x in p.q if x[0] <= 10]
    for ks in range(2, 20):
        nxt = ks + UPF
        if ks == 2: xstamp(a, "b", 10)
        if ks == 18:
            assert not p.q
            a(e1[0]); p.issued.append(-1)
        if ks == KB:
            a(e1[0]); p.issued.append(-2)
        p.step(ks, min(UPF - 1, 19 - ks), nxt if nxt < 20 else None, per=PER)
        if ks == KB:
            a(f"s_waitcnt lgkmcnt({len(p.issued) - 1 - p.issued.index(-2)})")
            a("v_and_b32 v9, 0xfff, v10")
            a(f"v_cmp_eq_u32 vcc, v9, v{TOKC}")
            a("s_cbranch_vccnz B_fast")
            saved = (list(p.q), list(p.issued), p.done)
        if ks == 2: xstamp(a, "b", 11)
        if ks == 10: xstamp(a, "b", 12)
    a("s_branch B_epi")
    if KB:
        a("B_fast:")
        a("s_setprio 3")
        p.q, p.issued, p.done = saved
        for ks in range(KB + UPF + 1, min(20, KB + 10)): ld(ks)
        for ks in range(KB + 1, 20):
            nxt = ks + 9
            p.step(ks, min(8, 19 - ks), nxt if nxt < 20 else None, per=PER)
        a("s_branch B_epi")
        a("B_fend:")
    a("B_half:")
    for ks in range(2 + UP0, 2 + UPH): ld(ks)
    p.issued = base; p.q = baseq; p.done = 1
    def eload():
        a("s_mov_b32 exec_hi, 0x0fffffff")
        a(f"buffer_load_dword v17, v{L4}, s[24:27], s{FPA} offen sc1")
        a("s_mov_b32 exec_hi, -1")
        for i in range(5): a(f"buffer_load_dwordx3 v[{ER[i]}:{ER[i]+2}], v4, s[24:27], s{EA[i]} offen sc1")
    ER = (224, 228, 240, 244, 208)
    def est():
        a(f"s_cmp_lg_u32 s{WV}, 6")
        a("s_cbranch_scc1 E_end")
        a("s_setprio 3")
        if EB < EST: a("s_branch E_chk")
        a("E_poll:")
        eload()
        a("E_chk:")
        a("s_waitcnt vmcnt(5)")
        a(f"v_cmp_ne_u32 vcc, s{TAG}, v17")
        a("s_lshl_b64 vcc, vcc, 4")
        a("s_cbranch_scc0 E_go")
        spin(a, "E_poll", ESL)
        a("E_go:")
        xstamp(a, "e", 11)
        P_, Q_, T_ = ER[0], 252, ER[1]
        for i in range(5):
            a(f"s_waitcnt vmcnt({4-i})")
            if i == 1:
                for j in range(3): a(f"v_add_f32 v{Q_+j}, v{ER[0]+j}, v{ER[1]+j}")
                for j in range(3): a(f"v_lshlrev_b32 v{ER[0]+j}, 16, v{ER[0]+j}")
            if i > 1:
                for j in range(3): a(f"v_add_f32 v{Q_+j}, v{Q_+j}, v{ER[i]+j}")
            if i:
                for j in range(3): a(f"v_lshlrev_b32 v{ER[i]+j}, 16, v{ER[i]+j}")
                for j in range(3): a(f"v_add_f32 v{P_+j}, v{P_+j}, v{ER[i]+j}")
        for j in range(3): a(f"v_permlane32_swap_b32 v{P_+j}, v{Q_+j}")
        for j in range(3): a(f"v_add_f32 v{P_+j}, v{P_+j}, v{Q_+j}")
        for j in range(3): a(f"v_rsq_f32 v{Q_+j}, v{P_+j}")
        for j in range(3): a(f"v_permlane32_swap_b32 v{Q_+j}, v{T_+j}")
        for j in range(3): a(f"v_mul_f32 v{P_+j}, {'-' if NOSPEC == 1 else ''}v{P_+j}, v{T_+j}")
        for j in range(3): a(f"v_and_or_b32 v{Q_+j}, v{P_+j}, v{OWN+j}, v{8+j}")
        a(f"v_max3_i32 v6, v{Q_}, v{Q_+1}, v{Q_+2}")
        for sh in (1, 2, 4, 8): a(f"v_max_i32_dpp v6, v6, v6 row_ror:{sh} row_mask:0xf bank_mask:0xf")
        a("v_mov_b32 v5, v6")
        a("v_permlane16_swap_b32 v6, v5")
        a("s_mov_b64 exec, 0xffff")
        a(f"s_cmp_lg_u32 s{LG}, 0")
        a("v_max3_i32 v6, v6, v5, 1")
        a("s_cbranch_scc1 E_np")
        a(f"buffer_store_dwordx2 v[6:7], v11, s[24:27], s{CDA} offen sc1")
        stamp(a, 9)
        a("E_np:")
        a(f"ds_write_b32 v{WOK}, v6 offset:{EKW - WOKA}")
        a("s_mov_b64 exec, -1")
        if OW:
            a("v_readfirstlane_b32 s64, v6")
            a(f"s_mul_i32 s65, s{RB}, 96"); a("s_and_b32 s64, s64, 0xfff"); a("s_sub_u32 s64, s64, s65"); a(f"s_add_u32 s64, s64, s{J0}"); a(f"s_lshl1_add_u32 s64, s64, s{SP}")
            a("s_mul_i32 s64, s64, 10"); a(f"s_add_u32 s64, s64, s{LG}"); a("s_lshl_b32 s64, s64, 7")
            a("s_buffer_load_dword s65, s[40:43], s64"); a("s_buffer_load_dword s65, s[40:43], s64 offset:64")
        xstamp(a, "e", 12)
        a("E_end:")
    for ks in range(1, 11):
        nxt = ks + UPH
        if ks == 10 and EST < 10:
            a(f"s_cmp_eq_u32 s{WV}, 6"); a("s_cbranch_scc1 B_w6"); a("s_waitcnt vmcnt(0)"); a("B_w6:")
            p.step(ks, None)
        elif ks > 1: p.step(ks, min(UPH - 1, 10 - ks), nxt if nxt < 11 else None, per=PERH)
        if KBH and ks == KBH - 1:
            a(e1[0]); p.issued.append(-3)
        if KBH and ks == KBH:
            a("s_waitcnt lgkmcnt(0)")
            a("v_and_b32 v9, 0xfff, v10")
            a("v_readfirstlane_b32 s64, v9")
            a("s_lshr_b32 s64, s64, 4"); a(f"s_mul_i32 s65, s{RB}, 6"); a(f"s_add_u32 s65, s65, s{RT}"); a("s_cmp_lg_u32 s64, s65")
            a("s_cbranch_scc1 B_nb")
            a("s_setprio 3")
            a("B_nb:")
        if ks == EB and EB < EST:
            assert nxt >= 10
            a(f"s_cmp_lg_u32 s{WV}, 6")
            a("s_cbranch_scc1 B_ne")
            eload()
            a("B_ne:")
        if ks == EST: est()
    a(f"s_lshl_b32 s61, s{RT}, 12"); a(f"s_add_u32 s61, s61, {PB}")
    a(f"v_add_u32 v16, s61, v{L16}")
    a(f"s_lshl_b32 s61, s{RT}, 2"); a(f"s_add_u32 s61, s61, {MODEW + 8 - 16}")
    a("v_mov_b32 v18, s61")
    a(f"s_cmp_eq_u32 s{KH}, 0")
    a("s_cbranch_scc1 B_rx0")
    a("B_pf:")
    a("ds_read_b32 v19, v18")
    a("s_waitcnt lgkmcnt(0)")
    a("v_cmp_eq_u32 vcc, 0, v19")
    a("s_cbranch_vccz B_pg")
    spin(a, "B_pf", 1)
    a("B_pg:")
    for t in range(4): a(f"ds_write_b128 v16, v[{BA+4*t}:{BA+4*t+3}] offset:{1024*t}")
    a("v_mov_b32 v19, 2")
    a("s_waitcnt lgkmcnt(0)")
    a("ds_write_b32 v18, v19")
    xstamp(a, "e", 10)
    a("s_branch L_fin")
    a("B_rx0:")
    if len(CST) < 4: cstamp(a, 11)
    xstamp(a, "e", 10)
    a("B_rx:")
    a("ds_read_b32 v19, v18")
    a("s_waitcnt lgkmcnt(0)")
    a("v_cmp_ne_u32 vcc, 2, v19")
    a("s_cbranch_vccz B_rd")
    spin(a, "B_rx", 0)
    a("B_rd:")
    a(e1[0])
    for t in range(4): a(f"ds_read_b128 v[{100+4*t}:{103+4*t}], v16 offset:{1024*t}")
    a("s_waitcnt lgkmcnt(0)")
    for i in range(16): a(f"v_add_f32 v{BA+i}, v{BA+i}, v{100+i}")
    a("B_epi:")
    a("s_waitcnt lgkmcnt(0)")
    a("v_cmp_eq_u32 vcc, 0, v10")
    a("v_and_b32 v10, 0xfff, v10")
    a("s_cbranch_vccnz B_ew")
    a("B_eg:")
    a(f"v_cmp_eq_u32 s[68:69], v10, v{TOKC}")
    a(f"v_add_u32 v10, s{TAG}, v10")
    a.cold += ["B_ew:", "    s_sleep 1", "    " + e1[0], f"    s_sub_u32 s{SPIN}, s{SPIN}, 1", "    s_cbranch_scc0 B_epi", f"    s_mov_b32 s{SPIN}, 0", "    s_waitcnt lgkmcnt(0)", "    s_branch B_eg"]
    stamp(a, 9)
    a("v_mov_b32 v16, 0x3f803f80")
    a(f"v_mov_b32 v15, s{TAG}")
    a(f"s_add_u32 s63, s{TBR}, {T_ST}")
    a(f"s_lshl_b32 s64, s{LG}, 8"); a("s_add_u32 s64, s64, s63")
    pack(a, HP, BA, 8)
    def push(mask):
        a(f"s_mov_b64 exec, {mask}")
        for i in range(2): a(f"ds_write_b128 v{HS}, v[{HP+4*i}:{HP+4*i+3}] offset:{16*i}")
        a("s_mov_b64 exec, -1")
        a(f"ds_read_b64 v[8:9], v{HR}")
    a("s_cmp_eq_u64 s[68:69], 0")
    a("s_cbranch_scc1 B_np2")
    if NOPUSH: a("s_branch B_np2")
    push("s[68:69]")
    for i in range(1, NREP // 4): a(f"s_add_u32 s{64+i}, s{CRB}, {4*i*RSTR}")
    a("s_waitcnt lgkmcnt(0)")
    for i in range(NREP // 4): a(f"buffer_store_dwordx3 v[8:10], v{CRO}, s[24:27], s{64+i if i else CRB} offen sc1")
    xstamp(a, "r", 10)
    a("B_np2:")
    if SM:
        a(f"v_mfma_f32_16x16x32_bf16 v[12:15], v[{WR}:{WR+3}], v[{HP}:{HP+3}], 0")
        a(f"v_mfma_f32_16x16x32_bf16 v[12:15], v[{WR+4}:{WR+7}], v[{HP+4}:{HP+7}], v[12:15]")
        for i in range(8): a(f"v_dot2_f32_bf16 v{16+(i&1)}, v{HP+i}, v{HP+i}, {'0' if i < 2 else 'v%d' % (16+(i&1))}")
        a("v_add_f32 v16, v16, v17")
        a("v_mov_b32 v17, v16")
        a("v_permlane32_swap_b32 v16, v17")
        a("v_add_f32 v16, v16, v17")
        a("v_mov_b32 v17, v16")
        a(f"v_mov_b32 v15, s{TAG}")
        a("v_permlane16_swap_b32 v16, v17")
        a("v_add_f32 v13, v16, v17")
    else:
        for i in range(8):
            c = lambda r: "0" if i == 0 else f"v{r}"
            a(f"v_dot2_f32_bf16 v12, v{HP+i}, v16, {c(12)}")
            a(f"v_dot2_f32_bf16 v13, v{HP+i}, v{HP+i}, {c(13)}")
            a(f"v_dot2_f32_bf16 v14, v{HP+i}, v{WR+i}, {c(14)}")
    def red_g(regs, tmp):
        for sw in ("v_permlane32_swap_b32", "v_permlane16_swap_b32"):
            for i, r in enumerate(regs): a(f"v_mov_b32 v{tmp+i}, v{r}")
            for i, r in enumerate(regs): a(f"{sw} v{tmp+i}, v{r}")
            for i, r in enumerate(regs): a(f"v_add_f32 v{r}, v{r}, v{tmp+i}")
    if not SM: red_g((12, 13, 14), 17)
    a("s_mov_b64 exec, 0xffff")
    st2(a, f"buffer_store_dwordx4 v[12:15], v{L16}, s[24:27], s64 offen")
    a("s_mov_b64 exec, -1")
    xstamp(a, None, 10)
    unpack(a, H, HP, 8)
    G0 = 100
    for i in range(3): a(f"v_mov_b32 v{G0+8+i}, 0")
    a(f"v_mov_b32 v{G0+11}, s{TAG}")
    a(f"v_mov_b32 v11, s{TAG}")
    a("v_mov_b32 v5, 1")
    a(f"v_lshlrev_b32 v7, 11, v{PN}")
    a(f"s_add_u32 s{CDA}, s{CDA}, {WS_TK - WS_EK}")
    a(f"s_sub_u32 s{CRB}, s{CRB}, {WS_ROWA - WS_ROWB}")
    sl = [f"buffer_load_dwordx4 v[{G0+4*i}:{G0+4*i+3}], v{L16}, s[24:27], s63 offen offset:{1024*i} sc1" for i in range(3)]
    if not RP & 1: a("S_poll:")
    a(sl[0]); a(sl[1])
    a("s_mov_b32 exec_hi, 0")
    a(sl[2])
    a("s_mov_b32 exec_hi, -1")
    if RP & 1:
        a("s_branch S_pw")
        a("S_poll:")
        repoll(a, "S_r", sl, ("s[58:59]", "s[64:65]", "s[66:67]"))
        a("S_pw:")
    a("s_waitcnt vmcnt(0)")
    a(f"v_cmp_ne_u32 s[58:59], s{TAG}, v{G0+3}")
    a(f"v_cmp_ne_u32 s[64:65], s{TAG}, v{G0+7}")
    a(f"v_cmp_ne_u32 s[66:67], s{TAG}, v{G0+11}")
    a("s_or_b64 vcc, s[58:59], s[64:65]")
    a("s_or_b64 vcc, vcc, s[66:67]")
    a("s_cbranch_scc0 S_got")
    spin(a, "S_poll", SSL)
    a("S_got:")
    xstamp(a, None, 11)
    for i in range(3): a(f"v_add_f32 v{12+i}, v{G0+i}, v{G0+4+i}")
    for i in range(3): a(f"v_add_f32 v{12+i}, v{12+i}, v{G0+8+i}")
    red_g((12, 13, 14), 17)
    ln_stats(a, 12, 13)
    a(f"v_fma_f32 v14, -v12, v{WALL}, v14")
    a("v_mul_f32 v14, v14, v13")
    sortkey(a, 6, 14)
    a(f"v_or_b32 v6, v6, v{TOKC}")
    a(f"s_and_b64 exec, s[4:5], 0xffff")
    a(f"ds_max_u32 v{WOK}, v6 offset:{TKW - WOKA}")
    if TKL:
        a(f"s_cmp_lg_u32 s{LG}, {PUBL}")
        a("s_cbranch_scc1 S_nk")
        a("s_mov_b64 exec, 1")
        a(f"ds_add_rtn_u32 v5, v{WOK}, v5 offset:20")
        a("s_mov_b64 exec, 0xffff")
        a(f"ds_read_b32 v10, v{WOK} offset:{TKW - WOKA}")
        a("s_waitcnt lgkmcnt(0)")
        a("v_readfirstlane_b32 s64, v5")
        a("s_cmp_lg_u32 s64, 5")
        a("s_cbranch_scc1 S_nk")
        a(f"buffer_store_dwordx2 v[10:11], v7, s[24:27], s{CDA} offen sc1")
        a("S_nk:")
    a("s_mov_b64 exec, -1")
    LN = XF
    def ost(fl):
        for tp in range(2): a(f"buffer_store_dwordx4 v[{LP+4*tp}:{LP+4*tp+3}], v{OUTA}, s[40:43], 0 offen offset:{64*tp}{fl}")
    if not EL: a("s_mov_b64 s[68:69], 0")
    a("s_and_b64 s[68:69], s[68:69], s[4:5]")
    a("s_cbranch_scc0 S_ne")
    a("s_call_b64 s[98:99], S_ln")
    a("s_mov_b64 exec, s[68:69]")
    ost(" sc1")
    a("s_mov_b64 exec, -1")
    a("S_ne:")
    a("s_waitcnt lgkmcnt(0)")
    a("s_barrier")
    a(f"ds_read_b32 v10, v{WOK} offset:{TKW - WOKA}")
    if not TKL: a(f"s_or_b32 s64, s{LG}, s{WV}")
    a("s_waitcnt lgkmcnt(0)")
    if not TKL:
        a("s_cbranch_scc1 S_nc")
        a("s_mov_b64 exec, 0xffff")
        a(f"buffer_store_dwordx2 v[10:11], v7, s[24:27], s{CDA} offen sc1")
        a("s_mov_b64 exec, -1")
    a("S_nc:")
    if WBP == 2:
        a(f"s_cmp_lg_u32 s{WV}, 5"); a("s_cbranch_scc1 S_nwb"); a("s_cmp_lt_u32 s2, 232"); a("s_cbranch_scc1 S_nwb")
        a("buffer_wbl2 sc1")
        a("S_nwb:")
    xstamp(a, None, 12)
    a("v_cmp_eq_u32 s[60:61], v10, v6")
    a("s_cmp_lg_u64 s[68:69], 0")
    a("s_cbranch_scc1 S_l2")
    a("s_call_b64 s[98:99], S_ln")
    a("S_l2:")
    a("s_and_b64 s[60:61], s[60:61], s[4:5]")
    a("s_cbranch_scc0 S_out")
    a("s_andn2_b64 exec, s[60:61], s[68:69]")
    a("s_cbranch_execz S_l3")
    ost(" sc1")
    a("S_l3:")
    push("s[60:61]")
    a("v_and_b32 v10, 0xfff, v10")
    a(f"v_add_u32 v10, s{TAG}, v10")
    a("s_mov_b64 exec, 0xffff")
    a("s_waitcnt vmcnt(0) lgkmcnt(0)")
    a(f"buffer_store_dwordx3 v[8:10], v{CRO}, s[24:27], s{CRB} offen sc1")
    a("S_out:")
    if ODL: a(f"s_sleep {ODL}")
    a("s_nor_b64 exec, s[60:61], s[68:69]")
    ost(OUTF)
    a("s_mov_b64 exec, -1")
    a("s_branch L_fin")
    a("S_ln:")
    pkf = lambda op, d, x, y, m="": a(f"v_pk_{op}_f32 v[{d}:{d+1}], v[{x}:{x+1}], v[{y}:{y+1}]{m}")
    for i in range(0, 16, 2): pkf("add", LN + i, H + i, 12, " op_sel_hi:[1,0] neg_lo:[0,1] neg_hi:[0,1]")
    pack(a, LP, LN, 8)
    unpack(a, LN, LP, 8)
    for i in range(0, 16, 2): pkf("mul", LN + i, LN + i, 12, " op_sel:[0,1]")
    pack(a, LP, LN, 8)
    unpack(a, LN, LP, 8)
    for i in range(0, 16, 2): pkf("add", LN + i, LN + i, H + i)
    pack(a, LP, LN, 8)
    for tp in range(2):
        o = LP + 4 * tp
        a(f"v_permlane16_swap_b32 v{o}, v{o+2}")
        a(f"v_permlane16_swap_b32 v{o+1}, v{o+3}")
    a("s_setpc_b64 s[98:99]")

def ffn(a):
    FI, SW = 49, 55
    W1, W2, XS, AC = 20, 140, 200, 232
    RS2 = 3328
    XROW, XRS, XPL = 16384, 1344, 672
    IDX = 252
    FM = 155648
    CAND, BEST, TKV, CSR, GU = 0, 32, 40, 256, 3584
    a("F_start:")
    common(a)
    a(f"s_and_b32 s{FI}, s2, 7"); a(f"s_lshl_b32 s{FI}, s{FI}, 1"); a(f"s_add_u32 s{FI}, s{FI}, s56"); a(f"s_sub_u32 s{FI}, s{FI}, 30")
    a(f"s_and_b32 s50, s{WV}, 1")
    a(f"s_lshr_b32 s51, s{WV}, 1")
    R0, R1, RD = 0, 49152, 98304
    a(f"s_mul_i32 s52, s{WV}, 6144")
    a(f"s_mul_i32 s61, s{FI}, 192"); a("v_mov_b32 v5, 128")
    for q in range(3):
        a(f"v_add_u32 v1, {64*q}, v0")
        a("v_mul_u32_u24 v2, 171, v1"); a("v_lshrrev_b32 v2, 11, v2")
        a("v_mul_u32_u24 v3, 12, v2"); a("v_sub_u32 v3, v1, v3")
        a("v_mul_u32_u24 v2, 3072, v2")
        if REMAP:
            a("v_lshl_add_u32 v3, v3, 4, s61")
            a("v_lshrrev_b32 v4, 8, v3")
            a("v_cmp_eq_u32 vcc, 9, v4")
            a("v_cndmask_b32 v4, 0, v5, vcc")
            a(f"v_xad_u32 v{210+q}, v3, v4, v2")
        else: a(f"v_lshl_add_u32 v{210+q}, v3, 4, v2")
    a(f"s_mul_i32 s60, s51, {160*3072}")
    if not REMAP: a("s_add_u32 s60, s60, s61")
    a(f"s_mov_b32 s30, {FF_BYTES}"); a("s_mov_b32 s31, 0x00020000")
    seq = []
    a("s_waitcnt lgkmcnt(0)")
    a("s_cmp_eq_u32 s50, 0")
    a("s_cselect_b32 s28, s14, s16"); a("s_cselect_b32 s29, s15, s17")
    def issue(c, lo=0, hi=6):
        for i in range(lo, hi):
            a(f"s_add_u32 m0, s52, {((R0, R1, RD)[c % 3] if F3 else (R0, R1)[c % 2]) + 1024*i}")
            a(f"s_add_u32 s62, s60, {(c*32 + (i//3)*16)*3072}")
            a(f"buffer_load_dwordx4 v{210+i%3}, s[28:31], s62 offen{FNT} lds")
        seq.extend([c] * (hi - lo))
    def issue_d(d):
        if REMAP:
            a(f"s_mul_i32 s62, s{FI}, 3"); a(f"s_add_u32 s62, s62, {d}"); a("s_lshr_b32 s63, s62, 2"); a("s_cmp_eq_u32 s63, 9"); a("s_cselect_b32 s63, 2, 0"); a("s_xor_b32 s62, s62, s63")
            a("s_mul_i32 s62, s62, 40960"); a("s_add_u32 s62, s62, s53")
        else: a(f"s_add_u32 s62, s61, {d*32*1280}")
        for i in range(5):
            a(f"s_add_u32 m0, s53, {((RD, R0, R1) if F3 else (RD, R1, R0))[d] + 1024*i}")
            a("s_nop 0")
            a(f"buffer_load_dwordx4 v{213+i}, s[32:35], s62 offen{FNT} lds")
        seq.extend([5 + d] * 5)
    issue(0)
    a("s_load_dword s54, s[24:25], 0")
    a.srd(4, 12, 1280)
    a.srd(32, 18, FF_BYTES)
    def wait_for(c):
        last = max(i for i, x in enumerate(seq) if x == c)
        a(f"s_waitcnt vmcnt({len(seq) - 1 - last})")
    if TLBW:
        a(f"s_cmp_lg_u32 s{WV}, 7")
        a("s_cbranch_scc1 F_ntlb")
        if DUTY:
            a(f"s_lshr_b32 s63, {DUTY}, s{FI}"); a("s_bitcmp0_b32 s63, 0")
            a("s_cbranch_scc1 F_ntlb")
        a(f"v_lshlrev_b32 v7, {TLBW}, v0")
        a("buffer_load_dword v219, v7, s[40:43], 0 offen sc1")
        a("buffer_load_dword v219, v7, s[36:39], 0 offen")
        a(f"v_lshlrev_b32 v7, {TLBW + 1}, v0")
        a("buffer_load_dword v219, v7, s[24:27], 64 offen sc1")
        a("F_ntlb:")
    if FB0: a("s_barrier")
    issue(1)
    a(f"s_mul_i32 s53, s{WV}, 5120")
    a(f"s_mul_i32 s61, s{FI}, {96*1280}"); a("s_add_u32 s61, s61, s53")
    a(f"s_and_b32 s63, s{WV}, 2"); a("s_lshl_b32 s63, s63, 2")
    for q in range(5):
        a(f"v_add_u32 v1, {64*q}, v0")
        a("v_mul_u32_u24 v2, 205, v1"); a("v_lshrrev_b32 v2, 14, v2")
        a("v_lshl_or_b32 v2, v2, 1, s63")
        a("v_xor_b32 v1, v1, v2")
        a(f"v_lshlrev_b32 v{213+q}, 4, v1")
    a("v_lshrrev_b32 v2, 4, v0")
    a("v_bfe_u32 v1, v0, 2, 2")
    a("v_lshl_add_u32 v3, v2, 3, v1")
    a("v_and_b32 v4, 3, v0")
    a("v_lshlrev_b32 v4, 3, v4")
    a("v_mul_u32_u24 v5, 192, v3")
    a(f"s_and_b32 s63, s{WV}, 5"); a("s_mul_i32 s63, s63, 6144"); a("s_and_b32 s66, s51, 1"); a("s_mul_i32 s64, s66, 96"); a("s_add_u32 s63, s63, s64")
    a("v_add3_u32 v218, v5, v4, s63")
    a("v_and_b32 v6, 1, v2")
    a("v_lshl_or_b32 v6, v6, 2, v1")
    a("v_lshlrev_b32 v6, 5, v6")
    a("v_mul_u32_u24 v3, 1280, v3")
    a(f"s_mul_i32 s63, s{WV}, 160")
    for t in range(5):
        a(f"s_add_u32 s64, s63, {32*t}")
        a("v_add_u32 v7, s64, v4")
        a("v_xor_b32 v7, v7, v6")
        a(f"v_add_u32 v{XS+t}, v7, v3")
        a(f"v_add_u32 v{XS+5+t}, {RD}, v{XS+t}")
    a("s_waitcnt lgkmcnt(0)")
    a(f"s_add_u32 s{TAG}, s{TAG}, {TAGINC}")
    a("s_mov_b32 s67, 0x3f803f80")
    for i in range(4): a(f"v_mov_b32 v{220+i}, s67")
    for i in range(6): a(f"v_mov_b64 v[{AC+2*i}:{AC+2*i+1}], 0")
    YS, YP, EKB, RWB, PASS, RM, TRY, VAL, RD_ = 8, 14, 15, 16, 17, 18, 20, 21, 44
    a("v_lshlrev_b32 v16, 3, v0")
    for i in range(3): a(f"buffer_load_dwordx2 v[{10+2*i}:{11+2*i}], v16, s[4:7], 0 offen offset:{512*i}")
    a("v_lshlrev_b32 v1, 4, v0")
    a("v_lshlrev_b32 v7, 6, v0")
    a(f"s_lshl_b32 s{EKB}, s{FI}, 11"); a(f"s_add_u32 s{EKB}, s{EKB}, {WS_EK}"); a(f"s_add_u32 s70, s{EKB}, {WS_TK - WS_EK}")
    a(f"s_cmp_eq_u32 s{WV}, 7"); a("s_cselect_b32 s65, s70, 2.0")
    a("s_mov_b64 exec, 0xffffff")
    a("buffer_load_dword v219, v7, s[24:27], s65 offen sc1")
    a("s_mov_b64 exec, -1")
    a(f"v_mov_b32 v8, {FM}")
    for i in range(4): a(f"v_mov_b32 v{224+i}, 0")
    for i in range(3): a(f"ds_write_b128 v8, v[224:227] offset:{16*i}")
    for i in range(4): a(f"ds_write_b128 v8, v[224:227] offset:{GU + 64 + 16*(i&1) + 128*(i>>1)}")
    a(f"s_mul_i32 s65, s{WV}, {XRS}"); a(f"s_add_u32 s45, s65, {XROW}"); a("v_lshl_add_u32 v16, v0, 2, s45")
    a("v_and_b32 v19, 15, v0")
    a("v_bfe_u32 v5, v0, 1, 1")
    a("v_mov_b32 v6, 0x44444444"); a("v_mov_b32 v9, 0xeeeeeeee"); a("v_cmp_eq_u32 vcc, 1, v5"); a(f"v_cndmask_b32 v{IDX}, v6, v9, vcc")
    a("v_lshlrev_b32 v6, 4, v2"); a("v_lshl_add_u32 v6, v5, 7, v6"); a("v_add_u32 v6, v6, v8")
    a("v_bfe_u32 v3, v0, 2, 2"); a("v_and_b32 v4, 1, v0"); a("v_lshl_add_u32 v3, v3, 1, v4")
    a(f"v_mul_u32_u24 v9, {XRS}, v3"); a(f"v_mul_u32_u24 v5, {XPL}, v5"); a("v_add_u32 v9, v9, v5")
    a("v_lshrrev_b32 v3, 1, v2"); a("v_mul_u32_u24 v3, 160, v3"); a("v_and_b32 v4, 1, v2"); a("v_lshl_add_u32 v3, v4, 4, v3")
    a(f"s_lshr_b32 s65, s{WV}, 2"); a("s_mul_i32 s63, s65, 320"); a("v_add3_u32 v9, v9, v3, s63")
    a("s_lshl1_add_u32 s65, s65, s50"); a("s_mul_i32 s65, s65, 768"); a("s_mul_i32 s66, s66, 384"); a("s_add_u32 s65, s65, s66")
    a("v_lshl_add_u32 v3, v19, 3, s65")
    a(f"v_add_u32 v230, {FM + CSR}, v3")
    a(f"v_mul_u32_u24 v4, {RS2}, v2"); a("v_add_u32 v3, v3, v4")
    a(f"s_mul_i32 s65, s{WV}, 48")
    a("v_add_u32 v4, s65, v0")
    a("v_bfe_u32 v5, v4, 1, 1"); a("v_lshlrev_b32 v5, 7, v5"); a("v_and_b32 v17, 1, v4"); a("v_lshl_add_u32 v5, v17, 1, v5")
    a("v_and_b32 v17, 0xfc, v4"); a("v_add_u32 v5, v5, v17"); a("v_lshrrev_b32 v17, 6, v4"); a("v_lshl_add_u32 v5, v17, 5, v5"); a("v_add_u32 v5, v5, v8")
    a("v_lshlrev_b32 v4, 3, v4")
    a("v_and_b32 v17, 7, v0"); a("v_lshlrev_b32 v18, 4, v17"); a("v_lshl_add_u32 v18, v2, 11, v18"); a("v_lshrrev_b32 v19, 3, v19"); a("v_lshl_add_u32 v229, v19, 12, v18")
    a(f"s_lshl_b32 s{YS}, s{WV}, 13"); a(f"s_lshl_b32 s65, s{FI}, 7"); a(f"s_add_u32 s{YS}, s{YS}, s65"); a(f"s_add_u32 s{YS}, s{YS}, {WS_YP}")
    a(f"s_sub_u32 s{RD_}, s{WV}, 2")
    a(f"s_lshl_b32 s{YP}, s{FI}, 12"); a(f"s_lshl_b32 s65, s{RD_}, 11"); a(f"s_add_u32 s{YP}, s{YP}, s65"); a(f"s_add_u32 s{YP}, s{YP}, {WS_YP}")
    a(f"s_lshr_b32 s65, s{FI}, 1"); a("s_lshl_b32 s65, s65, 6"); a(f"s_lshl3_add_u32 s65, s{FI}, s65")
    a(f"s_and_b32 s66, s{RD_}, 1"); a(f"s_movk_i32 s{RM+1}, 0xff"); a(f"s_cselect_b32 s{RM}, s{RM+1}, 0x00ff00ff"); a("s_mul_i32 s66, s66, 48"); a("s_add_u32 s65, s65, s66")
    a("v_and_b32 v18, 1, v2"); a("v_lshrrev_b32 v19, 1, v2"); a("v_lshl_or_b32 v18, v18, 1, v19"); a("v_min_u32 v18, 2, v18")
    a("v_lshl_add_u32 v18, v18, 4, v17"); a("v_add_u32 v18, s65, v18")
    a("v_bfe_u32 v19, v18, 1, 1"); a(f"v_mul_u32_u24 v19, {XPL}, v19"); a("v_and_b32 v17, 1, v18"); a("v_lshl_add_u32 v19, v17, 1, v19")
    a("v_and_b32 v17, 0xffc, v18"); a("v_add_u32 v19, v19, v17")
    a("v_lshlrev_b32 v18, 1, v18")
    a("v_mov_b32 v17, v229")
    a(f"s_sub_u32 s65, s{TAG}, 1"); a("v_mov_b32 v227, s65")
    a("s_mov_b32 exec_hi, 0")
    a(f"buffer_store_dwordx4 v[224:227], v17, s[24:27], s{YS} offen sc1")
    a("s_mov_b32 exec_hi, -1")
    seq.extend([-1] * 5)
    a(f"s_lshr_b32 s68, s{WV}, 1"); a(f"s_mul_i32 s68, s68, {RS2}"); a("s_lshl2_add_u32 s68, s50, s68")
    a(f"s_lshr_b32 s{RWB}, s{FI}, {(16 // NREP).bit_length() - 1}"); a(f"s_mul_i32 s{RWB}, s{RWB}, {RSTR}"); a(f"s_add_u32 s{RWB}, s{RWB}, {WS_ROWA}")
    a(f"s_mov_b32 s{PASS}, 0"); a(f"s_mov_b32 s{TRY}, {NTRY}")
    a(f"s_and_b32 s9, s{FI}, 1"); a(f"s_lshl3_add_u32 s9, s9, s{WV}"); a("s_cmp_eq_u32 s9, 6"); a("s_cselect_b32 s9, 0, 2")
    a(f"v_add_u32 v228, {FM + CSR}, v4")
    a(f"s_lshl_b32 s65, s{WV}, 2"); a("v_add_u32 v231, s65, v8")
    if PADS & 1:
        a("s_mov_b64 exec, 0")
        for q in range(HFN):
            a(f"s_cmp_eq_u32 s{WV}, {q}"); a(f"s_cbranch_scc1 HF{q}_0")
        a("HF_ret:")
        a("s_mov_b64 exec, -1")
        a.hops.append(("HF", "F_rdy", "L_last", HFN))
    if F3: issue(2)
    def sm(acc, x, b): return f"v_smfmac_f32_16x16x64_bf16 v[{acc}:{acc+3}], v[{x}:{x+3}], v[{b}:{b+7}], v{IDX}"
    for c in range(5):
        wait_for(c)
        a("s_barrier")
        if c in (0, 2, 4): xstamp(a, None, 10 + c // 2)
        if F3 and c == 2: a(f"v_add_u32 v229, {RD}, v218")
        for j in range(3):
            for q in range(2):
                for h in range(2):
                    b = W1 + 24 * c + 8 * j + 4 * q + 2 * h
                    a(f"ds_read_b64_tr_b16 v[{b}:{b+1}], v{229 if F3 and c == 2 else 218} offset:{((R0, R1, 0)[c % 3] if F3 else (R0, R1)[c % 2]) + q*12288 + h*768 + 32*j}")
        a("s_waitcnt lgkmcnt(0)")
        a("s_barrier")
        if c + 2 + F3 < 5: issue(c + 2 + F3)
        if c == (2 if F3 else D0AT): issue_d(0)
        if c >= 3: issue_d(c - 2)
        if c == 4 and EKE:
            a(f"s_cmp_eq_u32 s{WV}, 0"); a(f"s_cselect_b32 s65, s{EKB}, 2.0")
            a("s_mov_b64 exec, 0xffffff")
            a("buffer_load_dwordx2 v[224:225], v7, s[24:27], s65 offen sc1")
            a("s_mov_b64 exec, -1")
            seq.append(-1)
        for j in range(3): a(sm(AC + 4 * j, 220, W1 + 24 * c + 8 * j))
        if c == 2:
            for i in range(6): a(f"v_dot2_f32_bf16 v226, v{10+i}, s67, {'0' if i == 0 else 'v226'}")
            for sh in (1, 2, 4, 8): a(f"v_add_f32_dpp v226, v226, v226 row_ror:{sh} row_mask:0xf bank_mask:0xf")
            a("v_mov_b32 v229, v226"); a("v_permlane32_swap_b32 v226, v229"); a("v_add_f32 v226, v226, v229")
            a("v_mov_b32 v229, v226"); a("v_permlane16_swap_b32 v226, v229"); a("v_add_f32 v226, v226, v229")
            a(f"v_readfirstlane_b32 s{SW}, v226")
    def partials(adr, off):
        for j in range(3):
            a(f"v_pk_add_f32 v[{AC+4*j}:{AC+4*j+1}], v[{AC+4*j}:{AC+4*j+1}], v[{AC+4*j+2}:{AC+4*j+3}]")
            a(f"ds_write_b64 v{adr}, v[{AC+4*j}:{AC+4*j+1}] offset:{off + 128*j}")
    a("s_mov_b64 exec, 0xffff")
    partials(230, 0)
    a("s_mov_b64 exec, -1")
    a("s_waitcnt lgkmcnt(0)")
    for d in range(3):
        if d != 1:
            wait_for(6 + d // 2)
            a("s_barrier")
        if d == 0:
            for i in range(2): a(f"ds_read2st64_b32 v[{AC+2*i}:{AC+2*i+1}], v228 offset0:{6*i} offset1:{6*i+3}")
        for t in range(5):
            for h in range(2):
                b = W2 + 12 * t + 4 * d + 2 * h
                a(f"ds_read_b64_tr_b16 v[{b}:{b+1}], v{XS+(5 if d == 0 else 0)+t} offset:{((0, R0, R1) if F3 else (0, R1, R0))[d] + h*5120}")
        if d == 1:
            a("s_waitcnt lgkmcnt(0)")
            a(f"v_add_f32 v0, v{AC}, v{AC+2}"); a(f"v_add_f32 v2, v{AC+1}, v{AC+3}")
    a("s_waitcnt lgkmcnt(0)")
    a("F_rdy:")
    if WB2 == 7:
        a(f"s_cmp_lg_u32 s{WV}, 5"); a("s_cbranch_scc1 F_nw7"); a(f"s_lshr_b32 s63, {WBM}, s{FI}"); a("s_bitcmp0_b32 s63, 0"); a("s_cbranch_scc1 F_nw7")
        if WBD: a(f"s_sleep {WBD}")
        a("buffer_wbl2 sc1")
        a("F_nw7:")
    stamp(a, 1)
    a(f"s_cmp_lg_u32 s{WV}, 0")
    a("s_cbranch_scc1 F_wait")
    def keymax(r, t):
        a(f"v_max_u32_dpp v{t}, v{r}, v{r} row_ror:1 row_mask:0xf bank_mask:0xf")
        for sh in (2, 4, 8): a(f"v_max_u32_dpp v{t}, v{t}, v{t} row_ror:{sh} row_mask:0xf bank_mask:0xf")
        a(f"v_readlane_b32 s60, v{t}, 0"); a(f"v_readlane_b32 s62, v{t}, 16")
        a("s_max_u32 s60, s60, s62")
    a("s_mov_b64 exec, 0xffffff")
    if EKE: a("s_branch F_pw")
    a("F_poll:")
    a(f"buffer_load_dwordx2 v[224:225], v7, s[24:27], s{EKB} offen sc1")
    a("F_pw:")
    a("s_waitcnt vmcnt(0)")
    a(f"v_cmp_ne_u32 vcc, s{TAG}, v225")
    a("s_cbranch_vccz F_got")
    spin(a, "F_poll", FSL)
    a("F_got:")
    a("s_mov_b64 exec, -1")
    keymax(224, 226)
    a(f"s_max_u32 s60, s60, {EKD + 1}")
    a(f"s_sub_u32 s60, s60, {EKD}")
    a("F_thr:")
    a("v_cmp_le_u32 vcc, s60, v224")
    a(f"s_add_u32 s60, s60, {EKD // 8}")
    a("s_cbranch_scc1 F_thd")
    a("s_bcnt1_i32_b32 s62, vcc_lo")
    a("s_cmp_gt_u32 s62, 8")
    a("s_cbranch_scc1 F_thr")
    a("F_thd:")
    a("v_mbcnt_lo_u32_b32 v226, vcc_lo, 0")
    a("v_cmp_gt_u32 s[62:63], 8, v226")
    a("v_lshl_add_u32 v226, v226, 2, v8")
    a("s_and_b64 exec, vcc, s[62:63]")
    a(f"ds_write_b32 v226, v224 offset:{CAND}")
    a("s_mov_b64 exec, -1")
    a("s_waitcnt lgkmcnt(0)")
    a("F_wait:")
    a("s_waitcnt vmcnt(0)")
    a("s_barrier")
    a(f"ds_read_b32 v224, v231 offset:{CAND}")
    a("s_waitcnt lgkmcnt(0)")
    a("v_readfirstlane_b32 s60, v224")
    stamp(a, 2)
    if WBP == 5:
        a(f"s_cmp_lg_u32 s{WV}, 7"); a("s_cbranch_scc1 F_nwb"); a(f"s_bitcmp1_b32 s{FI}, 0"); a("s_cbranch_scc1 F_nwb")
        a("buffer_wbl2 sc1")
        a("F_nwb:")
    a("F_redo:")
    for i in range(6): a(f"v_mov_b64 v[{AC+2*i}:{AC+2*i+1}], 0")
    a("s_and_b32 s61, s60, 0xfff")
    a("s_cbranch_scc0 F_b1")
    a("s_lshr_b32 s62, s61, 4"); a("s_mul_i32 s62, s62, 171"); a("s_lshr_b32 s62, s62, 10"); a("s_mul_i32 s62, s62, 2560"); a(f"s_add_u32 s62, s62, s{RWB}")
    a(f"s_add_u32 s63, s{TAG}, s61")
    a("v_mov_b64 v[228:229], 0"); a("v_mov_b32 v230, s63")
    rl = [f"buffer_load_dwordx3 v[{220+4*i}:{222+4*i}], v1, s[24:27], s62 offen offset:{1024*i} sc1" for i in range(3)]
    if RS0: a(f"s_sleep {RS0}")
    if not RP & 2: a("F_row:")
    a(rl[0]); a(rl[1])
    a("s_mov_b32 exec_hi, 0")
    a(rl[2])
    a("s_mov_b32 exec_hi, -1")
    if RP & 2:
        a("s_branch F_rw")
        a("F_row:")
        repoll(a, "F_r", rl, ("s[58:59]", "s[64:65]", "s[10:11]"))
        a("F_rw:")
    a("s_waitcnt vmcnt(0)")
    a(f"ds_write2_b32 v16, v220, v221 offset0:0 offset1:{XPL//4}")
    a(f"ds_write2_b32 v16, v224, v225 offset0:64 offset1:{XPL//4 + 64}")
    a("s_mov_b32 exec_hi, 0")
    a("ds_write_b32 v16, v228 offset:512")
    a(f"ds_write_b32 v16, v229 offset:{XPL + 512}")
    a("s_mov_b32 exec_hi, -1")
    a("v_cmp_ne_u32 s[58:59], s63, v222")
    a("v_cmp_ne_u32 s[64:65], s63, v226")
    a("v_cmp_ne_u32 s[10:11], s63, v230")
    a("s_or_b64 vcc, s[58:59], s[64:65]")
    a("s_or_b64 vcc, vcc, s[10:11]")
    a("s_cbranch_scc0 F_ok")
    if RSL: a(f"s_sleep {RSL}")
    a(f"s_sub_u32 s{TRY}, s{TRY}, 1")
    a("s_cbranch_scc0 F_row")
    a("F_b1:")
    def d1(fill):
        a("s_waitcnt lgkmcnt(0)")
        a("s_barrier")
        stamp(a, 3)
        if WBP == 4:
            l_ = "F_nwc" if fill else "F_nwb"
            a(f"s_cmp_lg_u32 s9, s{PASS}"); a(f"s_cbranch_scc1 {l_}")
            a("buffer_wbl2 sc1")
            a(l_ + ":")
        if PROF: a("s_waitcnt lgkmcnt(0)")
        for c in range(5): a(f"ds_read_b128 v[{XS+4*c}:{XS+4*c+3}], v9 offset:{XROW + 32*c}")
        fill = list(fill)
        for x in fill[:FH]: a(x)
        fill = fill[FH:]
        for c in range(5):
            a(f"s_waitcnt lgkmcnt({4-c})")
            for j in range(3):
                a(sm(AC + 4 * j, XS + 4 * c, W1 + 24 * c + 8 * j))
                for x in fill[:FP]: a(x)
                fill = fill[FP:]
        for x in fill: a(x)
    d1([])
    if WBP == 1:
        a(f"s_cmp_lg_u32 s{WV}, 6"); a("s_cbranch_scc1 F_nwb"); a(f"s_bitcmp1_b32 s{FI}, 0"); a("s_cbranch_scc1 F_nwb")
        a("buffer_wbl2 sc1")
        a("F_nwb:")
    a("s_nop 8")
    a("s_branch F_pw2")
    a("F_ok:")
    for i, r in enumerate((220, 221, 224, 225, 228, 229)):
        z = lambda q: "0" if i == 0 else f"v{q}"
        a(f"v_dot2_f32_bf16 v222, v{r}, s67, {z(222)}")
        a(f"v_dot2_f32_bf16 v223, v{r}, v{r}, {z(223)}")
        a(f"v_dot2_f32_bf16 v226, v{r}, v{10+i}, {z(226)}")
    class L(list):
        def __call__(self, x): self.append(x)
    f = L()
    f("v_mov_b32 v227, v226")
    f("v_permlane32_swap_b32 v222, v223")
    f("v_permlane32_swap_b32 v226, v227")
    f("v_add_f32 v222, v222, v223"); f("v_add_f32 v226, v226, v227")
    f("v_mov_b32 v224, s68")
    f("v_mov_b32 v223, s45")
    f("v_permlane16_swap_b32 v222, v226")
    f("v_add_f32 v222, v222, v226")
    for sh in (1, 2, 4, 8): f(f"v_add_f32_dpp v222, v222, v222 row_ror:{sh} row_mask:0xf bank_mask:0xf")
    f("v_readlane_b32 s64, v222, 32"); f("v_readlane_b32 s65, v222, 16")
    f("v_mov_b32 v220, v222")
    f("v_mov_b32 v221, s64")
    ln_stats(f, 220, 221)
    f(f"v_mul_f32 v222, s{SW}, v220")
    f("v_sub_f32 v222, s65, v222")
    f("v_mul_f32 v222, v222, v221")
    sortkey(f, 225, 222)
    f("v_or_b32 v225, s61, v225")
    d1(f)
    a("s_mov_b64 exec, 1")
    a("ds_write2_b32 v224, v220, v221 offset0:0 offset1:2")
    a("ds_write2_b32 v224, v222, v223 offset0:4 offset1:6")
    a(f"ds_max_u64 v8, v[224:225] offset:{BEST}")
    a("s_mov_b64 exec, -1")
    a("F_pw2:")
    xstamp(a, "f", 10)
    partials(3, 256)
    a(f"s_cmp_ge_u32 s{WV}, 2")
    for i in range(6, 10): a(f"v_mov_b64 v[{AC+2*i}:{AC+2*i+1}], 0")
    a("s_waitcnt lgkmcnt(0)")
    a("s_barrier")
    xstamp(a, "f", 11)
    a(f"ds_read_b64 v[224:225], v8 offset:{BEST}")
    for i in range(6): a(f"v_mov_b64 v[{AC+2*i}:{AC+2*i+1}], 0")
    a("s_waitcnt lgkmcnt(0)")
    a("s_cbranch_scc1 F_gu")
    P = 208
    a("v_add_u32 v227, v224, v4")
    a("ds_read2_b32 v[228:229], v224 offset0:0 offset1:2")
    for i in range(2): a(f"ds_read2st64_b32 v[{P+2*i}:{P+2*i+1}], v227 offset0:{6*i+1} offset1:{6*i+4}")
    a("s_waitcnt lgkmcnt(1)")
    a(f"v_fma_f32 v{P}, -v228, v0, v{P}"); a(f"v_fma_f32 v{P+1}, -v228, v2, v{P+1}")
    a("s_waitcnt lgkmcnt(0)")
    a(f"v_add_f32 v{P}, v{P}, v{P+2}"); a(f"v_add_f32 v{P+1}, v{P+1}, v{P+3}")
    a(f"v_mul_f32 v{P}, v{P}, v229"); a(f"v_mul_f32 v{P+1}, v{P+1}, v229")
    a(f"v_cvt_pk_bf16_f32 v{P+1}, v{P}, v{P+1}")
    a(f"v_lshlrev_b32 v{P}, 16, v{P+1}")
    a(f"v_mul_f32 v{P+2}, {f32(-LOG2E)}, v{P}")
    a(f"v_exp_f32 v{P+2}, v{P+2}")
    a(f"v_and_b32 v{P+1}, s{HIM}, v{P+1}")
    a(f"v_add_f32 v{P+2}, 1.0, v{P+2}")
    a(f"v_rcp_f32 v{P+2}, v{P+2}")
    a("s_mov_b32 exec_hi, 0xffff")
    a(f"v_mul_f32 v{P}, v{P}, v{P+2}")
    round_bf16(a, P, P)
    a(f"v_mul_f32 v{P}, v{P}, v{P+1}")
    a(f"v_cvt_pk_bf16_f32 v{P}, v{P}, v{P}")
    a(f"ds_write_b16 v5, v{P} offset:{GU}")
    a("s_mov_b64 exec, -1")
    a("s_waitcnt lgkmcnt(0)")
    a("F_gu:")
    a("s_barrier")
    xstamp(a, "f", 12)
    for ks in range(2): a(f"ds_read_b128 v[{XS+4*ks}:{XS+4*ks+3}], v6 offset:{GU+64*ks}")
    a("v_readfirstlane_b32 s61, v225")
    a("v_mov_b32 v220, 0")
    a("s_and_b32 s61, s61, 0xfff")
    a(f"s_add_u32 s63, s{TAG}, s61")
    a("v_mov_b32 v215, s63")
    for ks in range(2):
        a(f"s_waitcnt lgkmcnt({1-ks})")
        for t in range(5): a(sm(AC + 4 * t, XS + 4 * ks, W2 + 12 * t + 4 * ks))
        if ks == 0:
            a(f"s_cmp_lg_u32 s{WV}, 7")
            a("s_cbranch_scc1 F_n7")
            a("s_mov_b64 exec, 0xffffff")
            a("buffer_load_dwordx2 v[220:221], v7, s[24:27], s70 offen sc1")
            a("s_mov_b64 exec, -1")
            a("F_n7:")
    for t in range(3): a(f"v_add_f32 v{212+t}, v{AC+4*t}, v{AC+4*t+2}")
    a(f"s_mov_b32 exec_lo, s{HIM}")
    for t in range(3, 5): a(f"v_add_f32 v{209+t}, v{AC+4*t}, v{AC+4*t+2}")
    a("s_mov_b32 exec_lo, -1"); a("s_mov_b32 exec_hi, 0")
    a(f"buffer_store_dwordx4 v[212:215], v17, s[24:27], s{YS} offen sc1")
    a("s_mov_b32 exec_hi, -1")
    stamp(a, 4)
    a(f"s_cmp_lt_u32 s{RD_}, 2")
    a("s_cbranch_scc0 F_rest")
    a("ds_read2_b32 v[228:229], v224 offset0:0 offset1:2")
    a("ds_read2_b32 v[230:231], v224 offset0:4 offset1:6")
    a("s_lshr_b32 s65, s61, 4"); a("s_mul_i32 s65, s65, 171"); a("s_lshr_b32 s65, s65, 10")
    a("s_mul_i32 s64, s65, 2560"); a(f"s_add_u32 s64, s64, {WS_ROWB}")
    a("s_mul_i32 s71, s65, 96"); a("s_sub_u32 s66, s61, s71")
    a("s_lshr_b32 s71, s65, 1"); a("s_mul_i32 s71, s71, 86"); a("s_add_u32 s66, s66, s71"); a("s_sub_u32 s66, s66, 10")
    a("s_lshl_b32 s66, s66, 1"); a("s_and_b32 s65, s65, 1"); a("s_add_u32 s66, s66, s65")
    a("s_mul_i32 s66, s66, 1280")
    a("v_lshrrev_b32 v223, 3, v18"); a("v_lshlrev_b32 v223, 4, v223")
    a("s_waitcnt lgkmcnt(0)")
    a("v_add_u32 v226, v231, v19")
    a("v_and_b32 v226, 0xfffe, v226")
    a("ds_read_u16 v226, v226")
    round_bf16(a, 231, 230)
    a(f"v_mul_f32 v231, {f32(-LOG2E)}, v231")
    a("v_exp_f32 v231, v231")
    a("v_add_f32 v231, 1.0, v231")
    a("v_rcp_f32 v231, v231")
    a("s_waitcnt lgkmcnt(0)")
    a("v_lshlrev_b32 v226, 16, v226")
    round_bf16(a, 231, 231)
    a("v_sub_f32 v227, v226, v228")
    round_bf16(a, 227, 227)
    a("v_mul_f32 v227, v227, v229")
    round_bf16(a, 227, 227)
    if YW: a("s_waitcnt vmcnt(0)")
    Y = XS
    def landed():
        a(f"s_mov_b64 exec, s[{RM}:{RM+1}]")
        a("buffer_load_dword v222, v223, s[24:27], s64 offen offset:8 sc1")
        a("s_mov_b64 exec, -1")
    a("F_yp:")
    a(f"buffer_load_dwordx4 v[{Y}:{Y+3}], v1, s[24:27], s{YP} offen sc1")
    a(f"buffer_load_dwordx4 v[{Y+4}:{Y+7}], v1, s[24:27], s{YP} offen offset:1024 sc1")
    landed()
    a("s_waitcnt vmcnt(1)")
    a(f"ds_read_b32 v224, v8 offset:{TKV}")
    a(f"v_cmp_ne_u32 vcc, s63, v{Y+3}")
    a(f"v_cmp_ne_u32 s[58:59], s63, v{Y+7}")
    for i in range(3): a(f"v_add_f32 v{Y+i}, v{Y+i}, v{Y+4+i}")
    a("s_or_b64 vcc, vcc, s[58:59]")
    a("s_cbranch_scc1 F_chk")
    stamp(a, 5)
    a(f"v_mov_b32 v{Y+3}, v{Y+2}")
    a(f"v_permlane32_swap_b32 v{Y}, v{Y+1}")
    a(f"v_permlane32_swap_b32 v{Y+2}, v{Y+3}")
    a(f"v_add_f32 v{Y}, v{Y}, v{Y+1}"); a(f"v_add_f32 v{Y+2}, v{Y+2}, v{Y+3}")
    a(f"v_permlane16_swap_b32 v{Y}, v{Y+2}")
    a(f"v_add_f32 v{Y}, v{Y}, v{Y+2}")
    a(f"v_add_f32_dpp v{Y}, v{Y}, v{Y} row_ror:8 row_mask:0xf bank_mask:0xf")
    round_bf16(a, Y, Y)
    a(f"v_mul_f32 v{Y}, v{Y}, v231")
    round_bf16(a, Y, Y)
    a(f"v_add_f32 v{Y}, v{Y}, v227")
    round_bf16(a, Y, Y)
    a(f"v_add_f32 v{Y}, v{Y}, v226")
    a(f"v_cvt_pk_bf16_f32 v{Y}, v{Y}, v{Y}")
    a("F_vf:")
    a(f"s_mov_b64 exec, s[{RM}:{RM+1}]")
    a("s_waitcnt vmcnt(0) lgkmcnt(0)")
    a("v_readfirstlane_b32 s60, v224")
    a("v_cmp_ne_u32 vcc, s63, v222")
    a("s_and_b32 s62, s60, 0xfff")
    a("s_cmp_lg_u32 s62, s61")
    a("s_cbranch_scc1 F_vw")
    a("s_cbranch_vccnz F_vl")
    stamp(a, 8)
    a(f"buffer_store_short v{Y}, v18, s[40:43], s66 offen{FINF}")
    a(f"s_or_b32 s65, s{FI}, s{RD_}")
    a("s_cbranch_scc1 L_fin")
    a("s_mov_b64 exec, 1")
    a(f"v_mov_b32 v9, 0"); a(f"v_mov_b32 v10, s{TAG}")
    a(f"buffer_store_dword v10, v9, s[24:27], 0 offen{FINF}")
    stamp(a, 6)
    a("s_branch L_fin")
    a("F_vw:")
    a("s_cmp_lg_u32 s62, 0")
    a("s_cbranch_scc1 F_vx")
    a("s_cbranch_vccz F_vn")
    a("F_vl:")
    a("buffer_load_dword v222, v223, s[24:27], s64 offen offset:8 sc1")
    a("F_vn:")
    a(f"ds_read_b32 v224, v8 offset:{TKV}")
    spin(a, "F_vf", 0)
    a("s_branch L_fin")
    a("F_vx:")
    a(f"s_cmp_eq_u32 s{PASS}, 0")
    a("s_cbranch_scc1 F_again")
    a("s_branch L_fin")
    a("F_chk:")
    a("s_waitcnt lgkmcnt(0)")
    a("v_readfirstlane_b32 s60, v224")
    a("s_and_b32 s62, s60, 0xfff")
    a("s_cselect_b32 s62, s62, s61")
    a("s_cmp_lg_u32 s62, s61")
    a("s_cbranch_scc1 F_vx")
    spin(a, "F_yp", YSL)
    a("s_branch L_fin")
    a("F_rest:")
    a(f"s_cmp_lg_u32 s{PASS}, 0")
    a("s_cbranch_scc1 L_fin")
    a(f"s_cmp_lg_u32 s{WV}, 7")
    a("s_cbranch_scc1 F_tw")
    a("s_mov_b64 exec, 0xffffff")
    a("s_waitcnt vmcnt(1)")
    a("s_branch F_tc")
    a("F_tp:")
    a("buffer_load_dwordx2 v[220:221], v7, s[24:27], s70 offen sc1")
    a("s_waitcnt vmcnt(0)")
    a("F_tc:")
    a(f"v_cmp_ne_u32 vcc, s{TAG}, v221")
    a("s_cbranch_vccz F_tg")
    spin(a, "F_tp", 0)
    a("F_tg:")
    a("s_mov_b64 exec, -1")
    keymax(220, 222)
    a("s_and_b32 s62, s60, 0xfff"); a("s_cselect_b32 s60, s60, 1")
    a("v_mov_b32 v220, s60")
    a(f"ds_write_b32 v8, v220 offset:{TKV}")
    stamp(a, 7)
    if WB2 == 2 and not hasattr(a, "wb2"):
        a.wb2 = 1
        a(f"s_cmp_lg_u32 s{WV}, 0"); a("s_cbranch_scc1 B_nw2"); a("s_lshr_b32 s64, s2, 3"); a("s_cmp_lg_u32 s64, 19"); a("s_cbranch_scc1 B_nw2")
        a("buffer_wbl2 sc1"); a("s_waitcnt vmcnt(3)")
        a("B_nw2:")
    a("F_tw:")
    a(f"ds_read_b32 v224, v8 offset:{TKV}")
    a("s_waitcnt lgkmcnt(0)")
    a("v_readfirstlane_b32 s60, v224")
    a("s_and_b32 s62, s60, 0xfff")
    a("s_cbranch_scc1 F_tk")
    spin(a, "F_tw", 2)
    a("s_branch L_fin")
    a("F_tk:")
    a("s_cmp_eq_u32 s62, s61")
    a("s_cbranch_scc1 L_fin")
    a("F_again:")
    stamp(a, 9)
    a("s_mov_b64 exec, -1")
    if CNT:
        a(f"s_lshl_b32 s62, s{FI}, 3"); a(f"s_add_u32 s62, s62, s{WV}"); a("s_lshl_b32 s62, s62, 4"); a(f"s_add_u32 s62, s62, {WS_PROF}")
        a(f"v_mov_b32 v224, s{TRY}"); a("v_mov_b32 v225, s61"); a("v_mov_b32 v226, s60"); a("v_mov_b32 v227, 0")
        a("buffer_store_dwordx3 v[224:226], v227, s[24:27], s62 offen")
    a("s_waitcnt vmcnt(0)")
    a(f"s_mov_b32 s{PASS}, 1"); a(f"s_mov_b32 s{RWB}, {WS_ROWB}"); a(f"s_mov_b32 s{TRY}, 0x40000")
    a("v_mov_b64 v[224:225], 0")
    a(f"s_cmp_eq_u32 s{WV}, 0")
    a("s_cselect_b32 s60, s60, 0")
    a("s_cbranch_scc0 F_redo")
    a(f"ds_write_b64 v8, v[224:225] offset:{BEST}")
    a("s_branch F_redo")

HEADER = ""
ref = f"cdna_kernels/{NAME}.s.ref"
if os.path.exists(ref): HEADER = open(ref).read().split("; Override launch")[0]
HEADER += """; One fused kernel (generated by dev2/g79.py): 240 WGs = 24 blocks of same-parity tokens x 10 groups of 64 columns, 16 WGs hold the FFN weights.
; The FFN WGs start early on up to eight likely tokens; the exact router keys of all tokens decide, and a wrong guess is redone with the exact token.
"""
def build():
    a = Asm()
    a.cold = []
    a.hops = []
    k = NAME + "_kernel"
    a.launches.append(f"; @launch grid=(256,1,1) block=(512,1,1) lds={LDS_BYTES}")
    a.begin_kernel(k)
    prologue(a)
    loader(a)
    a("F_pre:")
    a("s_cmp_ge_u32 s2, 256")
    a("s_cbranch_scc1 L_end")
    a("s_getpc_b64 s[58:59]")
    a("P_main:")
    a("v_lshlrev_b32 v2, 7, v0")
    a("v_cmp_gt_u32 vcc, L_last-P_main, v2")
    a("v_cndmask_b32 v2, 0, v2, vcc")
    a("global_load_dword v219, v2, s[58:59]")
    a("s_branch F_start")
    cons_pre(a)
    consumer(a)
    attention(a)
    phase_b(a)
    a("L_fin:")
    dump_stamps(a)
    a("L_end:")
    a("s_endpgm")
    a.lines += a.cold
    loader2(a)
    for i in range(PAD3): a("s_nop 0")
    ffn(a)
    a("L_last:")
    if DBG & {"noload", "nomfma", "noread"}:
        i0 = a.lines.index("LD_issue:"); i1 = a.lines.index("LD_cont:"); j0 = a.lines.index("A_loop:"); j1 = a.lines.index("A_tail:")
        out = []
        for i, ln in enumerate(a.lines):
            if i0 < i < i1 and "noload" in DBG and "buffer_load" in ln: continue
            if j0 < i < j1 and "nomfma" in DBG and "v_mfma" in ln: continue
            if j0 < i < j1 and "noread" in DBG and "ds_read" in ln: continue
            out.append(ln)
        a.lines = out
    if TDBG:
        j0 = a.lines.index("A_tail:"); j1 = a.lines.index("AT_start:")
        a.lines = [ln for i, ln in enumerate(a.lines) if not (j0 < i < j1 and any(x in ln for x in TDBG))]
    if HALFRD:
        j0 = a.lines.index("B_run:" if HALFRD == 1 else "B_start:"); j1 = a.lines.index("B_rx:")
        a.lines = [ln for i, ln in enumerate(a.lines) if not (j0 < i < j1 and "ds_read_b64_tr" in ln)]
    if BDBG:
        j0 = a.lines.index("B_run:"); j1 = a.lines.index("B_rx:")
        a.lines = [ln for i, ln in enumerate(a.lines) if not (j0 < i < j1 and any(x in ln for x in BDBG))]
    a.end_kernel(k, 256)
    t = a.text(HEADER)
    if a.hops:
        from pads import add_pads
        t = add_pads(t, a.hops, PADGAP)
    return t

if __name__ == "__main__":
    open(sys.argv[1], "w").write(build())
```
